```python
import torch

def _softmax(x, axis=-1):
    return torch.softmax(x, dim=axis)
def _gelu(x):
    return torch.nn.functional.gelu(x, approximate="tanh")
def _silu(x):
    return torch.nn.functional.silu(x)
def _sigmoid(x):
    return torch.sigmoid(x)
def _layernorm(x, axis=-1, eps=1e-5):
    m = x.mean(dim=axis, keepdim=True)
    v = x.var(dim=axis, keepdim=True, unbiased=False)
    return (x - m) / torch.sqrt(v + eps)
def _scatter_add(tgt, idx, src, axis=0):
    return tgt.clone().index_add_(axis, idx, src)
def _segment_sum(src, seg, n):
    out = torch.zeros((n,) + src.shape[1:], dtype=src.dtype)
    return out.index_add_(0, seg, src)
def _pad(x, pw):
    flat = tuple(v for pair in reversed(pw) for v in pair)
    return torch.nn.functional.pad(x, flat)

kernel_name = 'gated_mix__ssm_conv_s4__glu_gated_bilinear__prompt'

def setup_inputs():

    _w = (lambda a: (lambda t: t.to(torch.bfloat16) if t.is_floating_point() else t)(torch.as_tensor(a)))
    def _A_setup():
        B, L, D, N = 1, 2048, 640, 192
        A_re = -(lambda _x: torch.exp(torch.as_tensor(_x)))((lambda *s: torch.randn(*s, dtype=torch.bfloat16) * 6.4)(D, N))
        A_im = torch.pi * (lambda *s: torch.randn(*s, dtype=torch.bfloat16) * 0.05)(D, N)
        B_re = (lambda *s: torch.randn(*s, dtype=torch.bfloat16) * 0.05)(D, N)
        B_im = (lambda *s: torch.randn(*s, dtype=torch.bfloat16) * 0.05)(D, N)
        C_re = (lambda *s: torch.randn(*s, dtype=torch.bfloat16) * 0.05)(D, N)
        C_im = (lambda *s: torch.randn(*s, dtype=torch.bfloat16) * 0.05)(D, N)
        log_dt = (lambda *s: torch.randn(*s, dtype=torch.bfloat16) * 0.05)(D) * 0.5 - 4.0
        Dskip = (lambda *s: torch.randn(*s, dtype=torch.bfloat16) * 0.05)(D)
        return {
            "u": _w((lambda *s: torch.randn(*s, dtype=torch.bfloat16) * 0.05)(B, L, D)),
            "A_re": _w(A_re),
            "A_im": _w(A_im),
            "B_re": _w(B_re),
            "B_im": _w(B_im),
            "C_re": _w(C_re),
            "C_im": _w(C_im),
            "log_dt": _w(log_dt),
            "Dskip": _w(Dskip),
        }
    _A_in = _A_setup()

    def _B_setup():
        B, S, D, F = 1, 2048, 640, 1536
        return {
            "x": _w((lambda *s: torch.randn(*s, dtype=torch.bfloat16) * 0.05)(B, S, D)),
            "w_gate": _w((lambda *s: torch.randn(*s, dtype=torch.bfloat16) * 0.8)(D, F) * (D ** -0.5)),
            "w_up": _w((lambda *s: torch.randn(*s, dtype=torch.bfloat16) * 0.8)(D, F) * (D ** -0.5)),
            "w_down": _w((lambda *s: torch.randn(*s, dtype=torch.bfloat16) * 0.8)(F, D) * (F ** -0.5)),
        }
    _B_in = _B_setup()

    return {
        "A_u": _A_in["u"],
        "A_A_re": _A_in["A_re"],
        "A_A_im": _A_in["A_im"],
        "A_B_re": _A_in["B_re"],
        "A_B_im": _A_in["B_im"],
        "A_C_re": _A_in["C_re"],
        "A_C_im": _A_in["C_im"],
        "A_log_dt": _A_in["log_dt"],
        "A_Dskip": _A_in["Dskip"],
        "B_x": _B_in["x"],
        "B_w_gate": _B_in["w_gate"],
        "B_w_up": _B_in["w_up"],
        "B_w_down": _B_in["w_down"],
        "gate_w": _w((lambda *s: torch.randn(*s, dtype=torch.bfloat16) * 0.05)(640) * 16.0),
    }

def reference(A_u, A_A_re, A_A_im, A_B_re, A_B_im, A_C_re, A_C_im, A_log_dt, A_Dskip, B_x, B_w_gate, B_w_up, B_w_down, gate_w):
    def _A_ref(u, A_re, A_im, B_re, B_im, C_re, C_im, log_dt, Dskip):
        Bsz, L, D = u.shape
        dt = torch.exp(log_dt)[:, None]
        A = A_re + 1j * A_im
        Bc = B_re + 1j * B_im
        Cc = C_re + 1j * C_im
        logdA = dt * A
        dB = dt * Bc
        l = (lambda x, dt: x.to(dt))(torch.arange(L), A_re.dtype)
        P = torch.exp(logdA[:, :, None] * l[None, None, :])
        K = torch.einsum("dn,dnl,dn->dl", Cc, P, dB).real
        L2 = 2 * L
        Kp = _pad(K, ((0, 0), (0, L)))
        up = (lambda x, *d: x.permute(*d))(u, 0, 2, 1)
        up = _pad(up, ((0, 0), (0, 0), (0, L)))
        Kf = (lambda x, axes=(-2,-1): torch.fft.rfft2(x.float(), dim=axes))(Kp[:, None, :], axes=(-2, -1))
        Uf = (lambda x, axes=(-2,-1): torch.fft.rfft2(x.float(), dim=axes))(up[:, :, None, :], axes=(-2, -1))
        Yf = Uf * Kf[None, :, :, :]
        y = (lambda x, s, axes=(-2,-1): torch.fft.irfft2(x, s=s, dim=axes).to(torch.bfloat16))(Yf, (1, L2), axes=(-2, -1))[:, :, 0, :L]
        y = (lambda x, *d: x.permute(*d))(y, 0, 2, 1) + u * Dskip[None, None, :]
        return y

    def _B_ref(x, w_gate, w_up, w_down):
        g = torch.einsum("bsd,df->bsf", x, w_gate)
        u = torch.einsum("bsd,df->bsf", x, w_up)
        h = g * u
        return torch.einsum("bsf,fd->bsd", h, w_down)

    x = A_u
    g = _sigmoid((x * gate_w).sum(-1, keepdims=True))
    a = _A_ref(x, A_A_re, A_A_im, A_B_re, A_B_im, A_C_re, A_C_im, A_log_dt, A_Dskip)
    b = _B_ref(x, B_w_gate, B_w_up, B_w_down)
    return g * a + (1 - g) * b
```

```python
HF=0; WDF=0x600000; UT=0x800000; AT=0xB00000; GG=0xE00000; ST=0xF00000
NAME='gated_mix__ssm_conv_s4__glu_gated_bilinear__prompt_kernel'
SPIN=200000
class Gen:
    def __init__(s,opt): s.L=[]; s.vm=[]; s.opt=opt; s.nst=0
    def a(s,t):
        for x in t.split('\n'):
            if x.strip(): s.L.append(x.strip())
    def v(s,t,tag=None):
        s.a(t); s.vm.append(tag)
    def vmn(s,*tags):
        idx=[i for i,t in enumerate(s.vm) if t in tags]
        if not idx: return None
        n=len(s.vm)-1-max(idx); s.vm=s.vm[max(idx)+1:]
        assert n<=63
        return n
    def wait(s,*tags,lgkm=None):
        n=s.vmn(*tags); p=[]
        if n is not None: p.append(f'vmcnt({n})')
        if lgkm is not None: p.append(f'lgkmcnt({lgkm})')
        if p: s.a('s_waitcnt '+' '.join(p))
    def wait0(s): s.vm=[]; s.a('s_waitcnt vmcnt(0)')
    def srd(s,d,p,n):
        s.a(f's_mov_b32 s{d}, s{p}\ns_mov_b32 s{d+1}, s{p+1}\ns_mov_b32 s{d+2}, {n}\ns_mov_b32 s{d+3}, 0x20000')
    def stamp(s,k):
        if 'st' in s.opt: s.a(f's_memrealtime s[{80+2*k}:{81+2*k}]')
    def dump(s,lab):
        if 'st' not in s.opt: return
        s.a(f's_memrealtime s[94:95]\ns_waitcnt lgkmcnt(0)\ns_cmp_lg_u32 s5, 0\ns_cbranch_scc1 {lab}\ns_mov_b64 exec, 1')
        s.a(f's_lshl_b32 s6, s2, 5\ns_add_u32 s6, s6, {ST}\nv_mov_b32 v1, s6')
        for k in range(8): s.a(f'v_mov_b32 v2, s{80+2*k}\nbuffer_store_dword v2, v1, s[52:55], 0 offen offset:{4*k}')
        s.a(f'{lab}:')
        for o in s.opt:
            if o.startswith('enc') and o[3]==lab[2]:
                k=int(o[4:]); s.a(f's_sub_u32 s9, s{80+2*k}, s80\ns_min_u32 s9, s9, 6000\ns_add_u32 s9, s9, 4000\ns_mov_b32 s8, 0\n{lab}_e:\ns_memrealtime s[6:7]\ns_waitcnt lgkmcnt(0)\ns_sub_u32 s6, s6, s80\ns_add_u32 s8, s8, 1\ns_cmp_ge_u32 s8, 20000\ns_cbranch_scc1 {lab}_x\ns_cmp_lt_u32 s6, s9\ns_cbranch_scc1 {lab}_e\n{lab}_x:')
    def pref(s,tag,vt,vd):
        if 'nopf' in s.opt: s.a(f'L_{tag}_pc:'); return
        s.a(f's_getpc_b64 s[6:7]\nL_{tag}_pc:\nv_lshlrev_b32 v{vt}, 7, v0\nv_min_u32 v{vt}, L_{tag}_end-L_{tag}_pc-4, v{vt}')
        s.v(f'global_load_dword v{vd}, v{vt}, s[6:7]','pf')
    def signal(s,lab,soff,vt,imm=0):
        s.a(f's_cmp_lg_u32 s5, 0\ns_cbranch_scc1 {lab}\ns_mov_b64 exec, 1\nv_mov_b32 v{vt}, 1')
        s.a(f'buffer_atomic_add v{vt}, off, s[56:59], {soff} offset:{imm} sc1\ns_mov_b64 exec, -1\n{lab}:')
    def flagload(s,vt,soff,imm=0,tag='fl'):
        s.v(f'buffer_load_dword v{vt}, off, s[56:59], {soff} offset:{imm} sc1',tag)
    def spin(s,lab,vt,soff,cnt,imm=0):
        s.a(f'''s_mov_b32 s8, 0
{lab}_l:
v_readfirstlane_b32 s9, v{vt}
s_add_u32 s8, s8, 1
s_cmp_ge_u32 s9, {cnt}
s_cbranch_scc1 {lab}_d
s_cmp_ge_u32 s8, {SPIN}
s_cbranch_scc1 {lab}_d
{'s_sleep 16' if 'slp' in s.opt else ''}
buffer_load_dword v{vt}, off, s[56:59], {soff} offset:{imm} sc1
s_waitcnt vmcnt(0)
s_branch {lab}_l
{lab}_d:''')
def w0(g,lab,body,n=1):
    g.a(f's_cmp_lg_u32 s5, 0\ns_cbranch_scc1 {lab}\n'+(f's_bfm_b64 exec, {n}, 0' if n<64 else '')); body(); g.a(f's_mov_b64 exec, -1\n{lab}:')
F_T=8; F_W=136

FL=0xE10000; FH=FL; FA=FL+0x800; FT=FL+0x2800; FW=FL+0x3000
def fload(vt,va,soff): return f'buffer_load_dword v{vt}, v{va}, s[52:55], {soff} offen sc1'
def iload(vt): return f'buffer_load_dword v{vt}, off, s[56:59], 0 sc1'
def spin2(g,lab,vt,ld):
    g.a(f"""s_mov_b32 s8, 0
{lab}_l:
v_cmp_eq_u32 vcc, 0, v{vt}
s_add_u32 s8, s8, 1
s_cbranch_vccz {lab}_d
s_cmp_ge_u32 s8, {SPIN}
s_cbranch_scc1 {lab}_d
{ld}
s_waitcnt vmcnt(0)
s_branch {lab}_l
{lab}_d:""")
def post(g,vt,va,soff): g.a(f'v_mov_b32 v{vt}, 1\nbuffer_store_dword v{vt}, v{va}, s[52:55], {soff} offen sc1')
```

```python
from common import *
def role_C(g):
    a=g.a; g.vm=[]
    a('.p2align 3\nL_C:\ns_setprio 3')
    g.pref('C',3,255)
    a('s_mul_i32 s10, s3, 20\ns_add_u32 s10, s10, s4\ns_sub_u32 s10, s10, 12')
    a('s_lshl_b32 s11, s10, 2\ns_add_u32 s11, s11, s5')
    a('s_mul_i32 s12, s11, 384\nv_lshl_add_u32 v2, v1, 2, s12\nv_lshl_add_u32 v3, v1, 1, s12')
    a('s_and_b32 s13, s11, -2\ns_lshl_b32 s13, s13, 1')
    a('s_waitcnt lgkmcnt(0)')
    for k in range(6): g.v(f'global_load_dword v{10+k}, v2, s[{18+2*k}:{19+2*k}]','p')
    a('s_load_dword s14, s[30:31], s13\ns_load_dword s15, s[32:33], s13')
    for k in range(6): g.v(f'global_load_ushort v{16+k}, v3, s[{18+2*k}:{19+2*k}] offset:256','q')
    g.srd(52,48,0x1000000); g.srd(56,46,256)
    a('s_setprio '+('2' if 'cp2' in g.opt else '0'))
    a('s_mul_i32 s12, s5, 20480')
    a('v_lshl_add_u32 v40, v1, 2, s12\ns_mov_b32 m0, s12')
    a('v_and_b32 v4, 31, v1\nv_lshrrev_b32 v5, 5, v1\nv_mul_u32_u24 v41, 272, v4\nv_lshlrev_b32 v6, 4, v5\nv_add3_u32 v41, v41, v6, s12')
    a('v_mov_b32 v6, 0x3f80\nds_write_b32 v40, v6 offset:8704')
    for r in range(16): a(f'v_mov_b32 v{160+r}, 0')
    a('v_lshlrev_b32 v42, 9, v5\nv_lshl_add_u32 v42, v4, 4, v42\nv_add_u32 v42, s12, v42')
    a('v_and_b32 v6, 3, v0\nv_mul_u32_u24 v7, 20480, v6\nv_lshrrev_b32 v6, 4, v0\nv_mul_u32_u24 v6, 80, v6\nv_bfe_u32 v9, v0, 2, 2\nv_lshlrev_b32 v8, 4, v9\nv_add3_u32 v7, v7, v6, v8')
    a('v_cmp_eq_u32 vcc, 0, v9\nv_cndmask_b32 v8, 16, 0, vcc\nv_add_u32 v8, v8, v7')
    a(f's_lshl_b32 s50, s10, 14\ns_add_u32 s51, s50, {UT}\nv_lshlrev_b32 v9, 4, v0')
    a('s_waitcnt lgkmcnt(0)')
    a('s_and_b32 s13, s11, 1\ns_lshl_b32 s13, s13, 4\ns_lshr_b32 s14, s14, s13\ns_lshl_b32 s14, s14, 16\ns_lshr_b32 s15, s15, s13\ns_lshl_b32 s15, s15, 16')
    a('v_mov_b32 v44, 0x3fb8aa3b\nv_mul_f32 v44, s14, v44\nv_exp_f32 v44, v44\nv_cmp_eq_u32 vcc, 0, v1\nv_mov_b32 v43, s15\nv_cvt_pk_bf16_f32 v44, v44, v44\nv_cndmask_b32 v43, 0, v43, vcc\nv_lshlrev_b32 v44, 16, v44')
    a('v_readfirstlane_b32 s14, v44')
    g.wait('p')
    for k in range(6): a(f'v_lshlrev_b32 v{22+k}, 16, v{10+k}\nv_and_b32 v{28+k}, 0xffff0000, v{10+k}')
    g.wait('q')
    for k in range(6): a(f'v_lshlrev_b32 v{34+k}, 16, v{16+k}')
    a(f's_lshl_b32 s68, s3, 8\ns_add_u32 s68, s68, {FT}\nv_lshlrev_b32 v193, 2, v1')
    g.stamp(1)
    a('s_mov_b32 s13, 0\n.p2align 3\nL_C_k:')
    a('s_cmp_lg_u32 s13, 2\ns_cbranch_scc1 L_C_k0')
    w0(g,'L_C_p',lambda:(a('s_waitcnt vmcnt(0)'),(None if 'cs' in g.opt else spin2(g,'L_C_T',192,fload(192,193,'s68')))),64)
    a('s_barrier')
    if 'cs' not in g.opt: g.stamp(2)
    for n in range(4):
        a(f'buffer_load_dwordx4 v[{176+4*n}:{179+4*n}], v9, s[52:55], s51 offen sc1\ns_add_u32 s51, s51, 4096')
    a('.p2align 3\nL_C_k0:')
    a('v_mul_f32 v22, s14, v22\nv_mul_f32 v23, s14, v23\nv_mul_f32 v24, s14, v24\nv_mul_f32 v25, s14, v25')
    a('v_mul_f32 v22, 0x3fb8aa3b, v22\nv_mul_f32 v23, 0.15915494, v23')
    Z={1:44,8:47,256:50,2:53,4:56}
    a('v_mul_f32 v59, 0x41000000, v22\nv_mul_f32 v60, 0x43800000, v22\nv_mul_f32 v61, 0x41000000, v23\nv_mul_f32 v62, 0x43800000, v23')
    a('v_exp_f32 v59, v59\nv_fract_f32 v61, v61\nv_exp_f32 v22, v22\nv_fract_f32 v23, v23\nv_exp_f32 v60, v60\nv_fract_f32 v62, v62')
    a('v_cos_f32 v47, v61\nv_mul_f32 v64, v26, v24\nv_sin_f32 v48, v61\nv_mul_f32 v65, v26, v25')
    a('v_cos_f32 v44, v23\nv_fma_f32 v64, -v27, v25, v64\nv_sin_f32 v45, v23\nv_fmac_f32 v65, v27, v24')
    a('v_cos_f32 v50, v62\nv_mul_f32 v47, v59, v47\nv_sin_f32 v51, v62\nv_mul_f32 v48, v59, v48')
    a('v_mul_f32 v44, v22, v44\nv_mul_f32 v45, v22, v45\nv_mul_f32 v50, v60, v50\nv_mul_f32 v51, v60, v51')
    a('v_sub_f32 v49, 0, v48\nv_sub_f32 v46, 0, v45\nv_sub_f32 v52, 0, v51')
    for k in range(6): a(f'v_mov_b32 v{22+k}, v{28+k}\nv_mov_b32 v{28+k}, v{34+k}')
    def cm(d,s,z,conj=False,si=None):
        si=s+1 if si is None else si
        zi,nzi=(z+2,z+1) if conj else (z+1,z+2)
        return [f'v_mul_f32 v{d}, v{s}, v{z}',f'v_mul_f32 v{d+1}, v{si}, v{z}',f'v_fmac_f32 v{d}, v{si}, v{nzi}',f'v_fmac_f32 v{d+1}, v{s}, v{zi}']
    tmp=[0]
    def outp(re,im,offs):
        t=76+(tmp[0]&3); tmp[0]+=1
        return [f'v_cvt_pk_bf16_f32 v{t}, v{re}, v{im}']+[(f'ds_write_b32 v40, v{t} offset:{o}' if 'noadd' in g.opt else f'ds_write_addtid_b32 v{t} offset:{o}') for o in offs if 'nodsw' not in g.opt]
    rows={}
    for hh in range(2):
        for r in range(16):
            if r<=8: key=(hh,r if hh==0 else [0,0,2,4,4,4,6,8,8][r])
            elif r<=11: key=(2+hh,4*(r-9))
            elif r<=13: key=(4+hh,8*(r-12))
            else: key=(6+hh,8*(r-14))
            rows.setdefault(key,[]).append(272*(8*(r>>2)+4*hh+(r&3)))
    B=[]; A=[]
    B.append(outp(47,49,[8704+272]))
    for b in range(2,32):
        d=66+2*(b&1);
        B.append((cm(d,47,47,True,49) if b==2 else cm(d,66+2*((b-1)&1),47,True))+outp(d,d+1,[8704+272*b]))
    A.append(cm(53,44,44)+['v_sub_f32 v55, 0, v54']+outp(64,65,rows[(0,0)]))
    A.append(cm(56,53,53)+['v_sub_f32 v58, 0, v57'])
    s=64
    for o in range(1,9):
        d=70+2*(o&1); A.append(cm(d,s,44)+outp(d,d+1,rows[(0,o)])); s=d
    base=64
    for blk in range(1,8):
        nb=74 if base==64 else 64
        A.append(cm(nb,base,50)+outp(nb,nb+1,rows[(blk,0)])); base=nb
        st={1:2,2:4,3:4}.get(blk,8); s=base
        for i,o in enumerate(range(st,9,st)):
            d=70+2*(i&1); A.append(cm(d,s,Z[st])+outp(d,d+1,rows[(blk,o)])); s=d
    a('.p2align 3')
    for i in range(max(len(A),len(B))):
        x=A[i] if i<len(A) else []; y=B[i] if i<len(B) else []
        if len(x)>=4 and len(y)>=4:
            for k in range(4): a(y[k]); a(x[k])
            x=x[4:]; y=y[4:]
        for t in y+x: a(t)
    a('s_add_u32 s13, s13, 1\ns_cmp_lg_u32 s13, 1\ns_cbranch_scc1 L_C_i')
    w0(g,'L_C_i',lambda:a(iload(194)))
    a('s_cmp_lg_u32 s13, 2\ns_cbranch_scc1 L_C_q')
    w0(g,'L_C_q',lambda:(a('s_waitcnt vmcnt(0)'),spin2(g,'L_C_I',194,iload(194)),a('s_mov_b64 exec, -1\n'+fload(192,193,'s68'))))
    if 'nokp' not in g.opt: a('s_setprio 2')
    for s in range(8):
        a(f'ds_read_b128 v[{96+8*s}:{99+8*s}], v41 offset:{32*s}\nds_read_b128 v[{100+8*s}:{103+8*s}], v41 offset:{8704+32*s}')
        if s==3: a('s_waitcnt lgkmcnt(6)\nv_mfma_f32_32x32x16_bf16 v[160:175], v[96:99], v[100:103], v[160:175]')
    for s in range(1,8):
        a(f's_waitcnt lgkmcnt({14-2*s})\nv_mfma_f32_32x32x16_bf16 v[160:175], v[{96+8*s}:{99+8*s}], v[{100+8*s}:{103+8*s}], v[160:175]')
    if 'cp2' not in g.opt: a('s_setprio 0')
    if 'cs' in g.opt: a('s_mov_b32 s84, s86\ns_mov_b32 s86, s88\ns_memrealtime s[88:89]\ns_waitcnt lgkmcnt(0)')
    a('s_cmp_lt_u32 s13, 3\ns_cbranch_scc1 L_C_k')
    if 'cs' not in g.opt: g.stamp(3)
    if 'cm2' in g.opt: a('s_setprio 2')
    a('v_mov_b32 v44, 0\nv_mov_b32 v45, 0\nv_mov_b32 v46, 0\nv_mov_b32 v47, 0\nv_lshl_add_u32 v48, v1, 4, s12')
    a(f'ds_write_b32 v40, v44\nds_write_b32 v40, v44 offset:4224\nds_write_b128 v48, v[44:47] offset:{8448+5120}\nds_write_b128 v48, v[44:47] offset:{8448+10848}')
    a('v_and_b32 v10, 1, v1\nv_cmp_eq_u32 vcc, 0, v10\nv_bfe_u32 v11, v1, 1, 3\nv_lshrrev_b32 v12, 4, v1')
    a('v_mov_b32 v13, 4240\nv_cndmask_b32 v13, 8, v13, vcc\nv_add_u32 v14, v11, v12\nv_lshl_add_u32 v2, v14, 3, v13\nv_add_u32 v2, s12, v2\nv_add_u32 v3, 2048, v2')
    a(f'v_mov_b32 v13, 5760\nv_cndmask_b32 v13, 0, v13, vcc\nv_sub_u32 v14, 7, v11\nv_mul_u32_u24 v14, 80, v14\nv_lshl_add_u32 v14, v12, 3, v14\nv_add3_u32 v4, v13, v14, s12')
    a('v_add_u32 v4, 8448, v4\nv_add_u32 v5, 1920, v4\nv_add_u32 v6, 3840, v4')
    a('v_add_f32 v160, v160, v43')
    P=lambda r:f'v{160+r}'
    a('v_cndmask_b32 v15, v173, v172, vcc\nv_cndmask_b32 v16, v175, v174, vcc')
    taps=[[P(r) for r in range(9)],[P(9)]*3+[P(10)]*3+[P(11)]*3,[P(12)]*4+['v15']+[P(13)]*4,[P(14)]*4+['v16']+[P(15)]*4]
    for k,t in enumerate(taps):
        o=50+10*(k&1)
        for q in range(4): a(f'v_cvt_pk_bf16_f32 v{o+q}, {t[2*q]}, {t[2*q+1]}')
        a(f'ds_write_b128 v42, v[{o}:{o+3}] offset:{64+1024*k}')
        for q in range(4): a(f'v_cvt_pk_bf16_f32 v{o+5+q}, {t[2*q+1]}, {t[2*q+2]}')
        a(f'ds_write_b32 v42, v{o+5} offset:{4224+76+1024*k}\nds_write_b96 v42, v[{o+6}:{o+8}] offset:{4224+80+1024*k}')
    a(f'v_cvt_pk_bf16_f32 v17, 0, v160\ns_mov_b64 exec, 1\nds_write_b32 v42, v17 offset:{4224+72}\ns_mov_b64 exec, -1')
    a('s_waitcnt vmcnt(0) lgkmcnt(0)\ns_barrier')
    for n in range(4):
        d=176+4*n; t=20+4*n
        a(f'ds_write_b128 v7, v[{d}:{d+3}] offset:{8448+1280*n}\nv_mov_b32 v{t}, v{d+1}\nv_mov_b32 v{t+1}, v{d+2}\nv_mov_b32 v{t+2}, v{d+3}')
        a(f'ds_write_b32 v8, v{d} offset:{8448+5760-20+1280*n}\nds_write_b96 v7, v[{t}:{t+2}] offset:{8448+5760+1280*n}')
    a('s_waitcnt lgkmcnt(0)\ns_barrier')
    if 'cs' not in g.opt: g.stamp(4)
    K=lambda b,x:64+64*(b&1)+4*x
    U=lambda b,x:96+64*(b&1)+4*x
    if 'rd2' in g.opt:
        def rdK(b,x): o=64*(x&3)+8*b; return [f'ds_read2_b64 v[{K(b,x)}:{K(b,x)+3}], v{2+(x>>2)} offset0:{o} offset1:{o+4}']
        def rdU(b,x): s=7-x; o=10*b+80*(s%3); return [f'ds_read2_b64 v[{U(b,x)}:{U(b,x)+3}], v{4+s//3} offset0:{o} offset1:{o+4}']
    else:
        def rdK(b,x): return [f'ds_read_b64 v[{K(b,x)+2*e}:{K(b,x)+2*e+1}], v2 offset:{512*x+64*b+32*e}' for e in range(2)]
        def rdU(b,x): return [f'ds_read_b64 v[{U(b,x)+2*e}:{U(b,x)+2*e+1}], v4 offset:{80*b+640*(7-x)+32*e}' for e in range(2)]
    def rds(b): return sum([rdK(b,0)]+[rdU(b,x) for x in range(8)]+[rdK(b,x) for x in range(1,8)],[])
    a('.p2align 3')
    for k,t in enumerate(rds(0)):
        a(t)
        if k%8==7 and k>8: a('s_waitcnt lgkmcnt(6)\ns_nop 0')
    for b in range(8):
        nx=rds(b+1) if b<7 else []
        a('s_waitcnt lgkmcnt(0)\ns_nop 0')
        n=0
        for x in range(8):
            for t in range(x,8):
                c='0' if (b==0 and x==0) else f'v[{192+4*t}:{195+4*t}]'
                a(f'v_mfma_f32_16x16x32_bf16 v[{192+4*t}:{195+4*t}], v[{K(b,x)}:{K(b,x)+3}], v[{U(b,t-x)}:{U(b,t-x)+3}], {c}')
                n+=1
                if (n%2==1 or 'rd2' not in g.opt) and nx: a(nx.pop(0))
    g.stamp(5)
    a('s_mul_i32 s13, s5, 20544\nv_lshlrev_b32 v13, 5, v11\nv_lshl_add_u32 v13, v12, 3, v13\nv_lshl_add_u32 v13, v10, 2, v13\nv_add_u32 v13, s13, v13')
    a('v_bfe_u32 v14, v1, 2, 2\nv_mul_u32_u24 v14, 20544, v14\nv_lshl_add_u32 v14, v12, 5, v14\nv_and_b32 v15, 3, v1\nv_lshl_add_u32 v14, v15, 3, v14\ns_lshl_b32 s13, s5, 9\nv_add_u32 v14, s13, v14')
    a('v_and_b32 v15, 60, v1\nv_bfe_u32 v16, v1, 1, 1\nv_lshl_add_u32 v16, v10, 1, v16\nv_add_u32 v15, v15, v16\nv_lshlrev_b32 v15, 4, v15')
    a(f's_lshl_b32 s13, s5, 12\ns_add_u32 s50, s50, s13\ns_add_u32 s50, s50, {AT}')
    for t in range(8):
        d=192+4*t; o=20+2*t
        a(f'v_cvt_pk_bf16_f32 v{o}, v{d}, v{d+2}\nv_cvt_pk_bf16_f32 v{o+1}, v{d+1}, v{d+3}\nds_write2st64_b32 v13, v{o}, v{o+1} offset0:{t} offset1:{t+8}')
    a('s_waitcnt lgkmcnt(0)\ns_barrier')
    for n in range(4): a(f'ds_read_b64_tr_b16 v[{40+4*n}:{41+4*n}], v14 offset:{128*n}\nds_read_b64_tr_b16 v[{42+4*n}:{43+4*n}], v14 offset:{2048+128*n}')
    for n in range(4): a(f's_waitcnt lgkmcnt({6-2*n})\nbuffer_store_dwordx4 v[{40+4*n}:{43+4*n}], v15, s[52:55], s50 offen offset:{1024*n} sc1')
    a(f's_lshl_b32 s13, s3, 5\ns_add_u32 s13, s13, s4\ns_lshl_b32 s13, s13, 2\ns_add_u32 s13, s13, {FA-48}\nv_lshlrev_b32 v3, 10, v1')
    g.stamp(6)
    g.wait0(); a('s_barrier')
    w0(g,'L_C_s',lambda:post(g,2,3,'s13'),8)
    g.dump('L_C_d')
    a('s_endpgm\nL_C_end:')
```

```python
from common import *
def role_F(g):
    a=g.a; g.vm=[]; o=g.opt
    a('.p2align 3\nL_F:')
    g.pref('F',3,255)
    a(f's_setprio 1\ns_lshl_b32 s98, s3, 7\ns_add_u32 s98, s98, {FW}\nv_lshlrev_b32 v253, 2, v1')
    a('s_and_b32 s10, s3, 3\ns_lshl_b32 s10, s10, 2\ns_and_b32 s11, s4, 3\ns_add_u32 s10, s10, s11')
    a('s_lshr_b32 s11, s3, 2\ns_lshl_b32 s11, s11, 3\ns_lshr_b32 s12, s4, 2\ns_add_u32 s11, s11, s12')
    a('s_and_b32 s12, s5, 1\ns_lshr_b32 s13, s5, 1')
    a('s_mul_i32 s14, s12, 192\ns_lshl_b32 s15, s13, 1\ns_mul_i32 s50, s10, 192\ns_mov_b32 s51, 0x15555556')
    for i in range(3):
        a(f'v_add_u32 v2, s14, v1' if i==0 else 'v_add_u32 v2, 64, v2')
        a(f'v_mul_hi_u32 v3, v2, s51\nv_mul_u32_u24 v4, 12, v3\nv_sub_u32 v4, v2, v4\nv_xor_b32 v4, s15, v4\nv_lshlrev_b32 v4, 4, v4\nv_mul_u32_u24 v3, 3072, v3\nv_add3_u32 v{215+i}, v3, v4, s50')
        if i<2: a('s_sub_u32 s50, s50, 1024')
    a('s_lshl_b32 s14, s11, 2\ns_add_u32 s14, s14, s5\ns_mul_i32 s14, s14, 40960')
    a('v_lshrrev_b32 v2, 3, v1\nv_mul_u32_u24 v2, 1280, v2\nv_and_b32 v3, 7, v1\nv_lshrrev_b32 v4, 4, v1\nv_xor_b32 v3, v3, v4\nv_lshlrev_b32 v3, 4, v3\nv_xor_b32 v5, 64, v3')
    a('v_add3_u32 v218, v2, v3, s14\ns_add_u32 s14, s14, 9216\nv_add3_u32 v219, v2, v5, s14\nv_add_u32 v220, 18432, v218\nv_add_u32 v221, 18432, v219')
    a('s_mul_i32 s70, s5, 3072\ns_lshl_b32 s71, s5, 12\ns_add_u32 s71, s71, 49152')
    a('s_cmp_eq_u32 s13, 0\ns_waitcnt lgkmcnt(0)\ns_cselect_b32 s64, s36, s38\ns_cselect_b32 s65, s37, s39\ns_mov_b32 s66, 1966080\ns_mov_b32 s67, 0x20000')
    g.srd(60,16,2621440)
    def dW(b):
        r=[f's_add_u32 m0, s70, {(b%4)*12288}' , f's_mov_b32 s72, {b*98304}']
        return r+[(f'buffer_load_dwordx4 v{215+i}, s[64:67], s72 offen offset:{1024*i} lds',f'W{b}') for i in range(3)]
    def dX(n):
        r=[f's_add_u32 m0, s71, {(n%2)*16384}' , f's_mov_b32 s73, {n*128}']
        return r+[(f'buffer_load_dwordx4 v{218+i}, s[60:63], s73 offen offset:{1024*i} lds',f'X{n}') for i in range(4)]
    def dD(kind,slot,n0):
        if kind=='w': r=[f's_add_u32 m0, s70, {slot*12288}']; c=3
        else: r=[f's_add_u32 m0, s71, {slot*16384}']; c=4
        r.append(f's_add_u32 s72, s74, {(25+n0)*1024}')
        return r+[(f'buffer_load_dwordx4 v244, s[52:55], s72 offen offset:{1024*i} sc1 lds','D') for i in range(c)]
    def em(x):
        if isinstance(x,tuple):
            if 'fakev' in o and x[0].endswith(' lds'): x=(x[0][:-4].replace('dwordx4 ','dwordx4 v[224:227], '),x[1])
            g.v(*x)
        else: a(x)
    for x in dW(0)+dX(0)+dW(1)+dW(2)+dX(1)+dW(3): em(x)
    g.srd(52,48,0x1000000); g.srd(56,46,256); g.srd(76,44,2621440)
    a('v_bfe_u32 v2, v1, 4, 1\nv_lshrrev_b32 v3, 5, v1\nv_bfe_u32 v4, v1, 2, 2\nv_lshl_add_u32 v4, v3, 3, v4\nv_mul_u32_u24 v4, 192, v4\nv_mul_u32_u24 v5, 6144, v2\nv_and_b32 v6, 3, v1\nv_lshlrev_b32 v6, 3, v6\nv_add3_u32 v4, v4, v5, v6')
    a('s_mul_i32 s14, s13, 3')
    for jj in range(3): a(f'v_xor_b32 v5, s14, v2\nv_lshl_add_u32 v{208+jj}, v5, 5, v4\ns_add_u32 s14, s14, 1')
    a('v_and_b32 v4, 31, v1\nv_bfe_u32 v5, v1, 1, 3\nv_xor_b32 v5, v5, v3\nv_lshlrev_b32 v4, 7, v4\ns_lshl_b32 s14, s12, 13\ns_add_u32 s14, s14, 49152\nv_add_u32 v4, s14, v4')
    for u in range(4): a(f'v_xor_b32 v6, {2*u}, v5\nv_lshl_add_u32 v{211+u}, v6, 4, v4')
    a('v_lshlrev_b32 v244, 4, v1')
    a('s_lshl_b32 s68, s3, 2\ns_lshr_b32 s69, s4, 3\ns_add_u32 s68, s68, s69\ns_and_b32 s69, s4, 7')
    a(f's_lshl_b32 s74, s69, 2\ns_add_u32 s74, s74, s5\ns_mul_i32 s74, s74, 61440\ns_add_u32 s74, s74, {WDF}')
    a(f's_lshl_b32 s75, s68, 2\ns_add_u32 s75, s75, s5\ns_mul_i32 s75, s75, 49152')
    a('v_lshlrev_b32 v4, 11, v3\nv_lshl_add_u32 v4, v2, 9, v4\nv_and_b32 v5, 15, v1\nv_lshl_add_u32 v4, v5, 4, v4')
    a('s_lshl_b32 s14, s12, 8\ns_lshl_b32 s15, s13, 10\ns_add_u32 s14, s14, s15\nv_add_u32 v245, s14, v4\nv_xor_b32 v246, 256, v245\nv_xor_b32 v247, 1024, v245\nv_xor_b32 v248, 1280, v245')
    a('v_add_u32 v249, s70, v244\nv_add_u32 v250, s71, v244\nv_mov_b32 v251, v1')
    a('s_lshl_b32 s50, s11, 1\ns_add_u32 s50, s50, s12\ns_lshl_b32 s50, s50, 4\ns_add_u32 s50, s50, s10\ns_lshl_b32 s50, s50, 1\ns_add_u32 s50, s50, s13\ns_mul_i32 s50, s50, 6144\ns_add_u32 s51, s50, 4096')
    WF=lambda b,jj,u:96+24*(b&1)+8*jj+4*u
    XF=lambda n,tt,u:144+32*(n&1)+16*tt+4*u
    def rW(b): return [f'ds_read_b64_tr_b16 v[{WF(b,jj,u)+2*e}:{WF(b,jj,u)+2*e+1}], v{208+jj} offset:{(b%4)*12288+(16*u+4*e)*192}' for u in range(2) for jj in range(3) for e in range(2)]
    def rX(n): return [f'ds_read_b128 v[{XF(n,tt,u)}:{XF(n,tt,u)+3}], v{211+u} offset:{(n%2)*16384+4096*tt}' for u in range(4) for tt in range(2)]
    g.wait('W0','X0'); a('s_barrier')
    g.stamp(1)
    for k,x in enumerate(rX(0)+rW(0)):
        a(x)
        if k==11: a('s_waitcnt lgkmcnt(6)')
    a('.p2align 3')
    for b in range(20):
        tags=[f'W{b+1}']+([f'X{(b+1)//2}'] if b&1 else [])
        if b in (11,15): tags.append('fl')
        g.wait(*tags,lgkm=0)
        if b==11: w0(g,'L_F_i',lambda:spin2(g,'L_F_I',223,iload(223))); a('.p2align 3\ns_nop 0')
        if b==15: w0(g,'L_F_p',lambda:spin2(g,'L_F_W',223,fload(223,253,'s98')),32); a('.p2align 3\ns_nop 0')
        a('s_barrier')
        dm=[]; fl=[]
        if b+4<20: dm+=dW(b+4)
        if 'burst' in o:
            if b%2==0 and b//2+2<10: dm+=dX(b//2+2)
        elif b//2+2<10:
            x=dX(b//2+2); dm+=x[:2]+x[2+2*(b&1):4+2*(b&1)]
        if b==8: fl=['s_mov_b64 exec, 1',(iload(223),'fl'),'s_mov_b64 exec, -1']
        if b==12: fl=['s_mov_b32 exec_hi, 0',(fload(223,253,'s98'),'fl'),'s_mov_b64 exec, -1']
        if b==16: dm+=dD('w',0,0)+dD('x',0,3)
        if b==17: dm+=dD('w',1,7)
        if b==18: dm+=dD('w',2,10)+dD('x',1,13)
        if b==19: dm+=dD('w',3,17)
        rd=[]
        if b<19:
            w=rW(b+1)
            if b&1:
                x=rX((b+1)//2); rd=x[:2]+w[:6]+x[2:4]+w[6:]+x[4:]
            else: rd=w
        if 'nord' in o: rd=[]
        if 'nodma' in o and b<16: dm=[]
        n=0; nd=sum(isinstance(x,tuple) for x in dm); pos=range(12) if 'burst' in o else {0:[],3:[0,4,8],5:[0,2,5,7,9],7:[0,1,3,5,6,8,10]}[nd]
        for u in range(2):
            for jj in range(3):
                for tt in range(2):
                    d=16*(2*jj+tt); c='0' if (b==0 and u==0) else f'v[{d}:{d+15}]'
                    xf=XF(b//2,tt,2*(b&1)+u); wf=WF(b,jj,u)
                    if 'nomf' not in o: a(f'v_mfma_f32_32x32x16_bf16 v[{d}:{d+15}], v[{wf}:{wf+3}], v[{xf}:{xf+3}], {c}')
                    k=2 if len(rd)<=2*(10-n) else 3
                    for _ in range(k):
                        if rd: a(rd.pop(0))
                    if n in pos:
                        while dm:
                            x=dm.pop(0); em(x)
                            if isinstance(x,tuple): break
                    n+=1
        assert not rd
        for x in dm+fl: em(x)
    g.stamp(2)
    for jj in range(3):
        for tt in range(2):
            d=16*(2*jj+tt); h=96+4*(2*jj+tt)
            for r in range(8): a(f'v_mul_f32 v{d+r}, v{d+r}, v{d+8+r}')
            for q in range(4): a(f'v_cvt_pk_bf16_f32 v{h+q}, v{d+2*q}, v{d+2*q+1}')
            off=jj*2048+tt*1024
            g.v(f'buffer_store_dwordx4 v[{h}:{h+3}], v244, s[52:55], s{50+off//4096} offen offset:{off%4096} sc1','hs')
    R=lambda k,j:80+20*k+4*j
    H=lambda s,m:180+16*(s&3)+4*m
    def lR(k,s):
        return [f's_add_u32 s72, s74, {s*5120}',f's_add_u32 s73, s74, {s*5120+4096}']+[(f'buffer_load_dwordx4 v[{R(k,j)}:{R(k,j)+3}], v244, s[52:55], s{72+j//4} offen offset:{(j&3)*1024} sc1',f'R{s}') for j in range(5)]
    def lH(s):
        return [f's_add_u32 s14, s75, {HF+s*4096}']+[(f'buffer_load_dwordx4 v[{H(s,m)}:{H(s,m)+3}], v{245+m}, s[52:55], s14 offen sc1',f'H{s}') for m in range(4)]
    def lL(k,s):
        r=[]
        for j in range(5):
            n=(s-5)*5+j
            for (n0,c,v,off) in ((0,3,249,0),(3,4,250,0),(7,3,249,12288),(10,3,249,24576),(13,4,250,16384),(17,3,249,36864)):
                if n0<=n<n0+c: r.append(f'ds_read_b128 v[{R(k,j)}:{R(k,j)+3}], v{v} offset:{off+(n-n0)*1024}')
        return r
    a(f's_lshl_b32 s11, s11, 5\ns_add_u32 s10, s10, s11\ns_lshl_b32 s10, s10, 2\ns_add_u32 s10, s10, {FH}\ns_lshr_b32 s11, s68, 1\ns_lshl_b32 s11, s11, 7\ns_add_u32 s11, s11, {FH}\ns_lshl_b32 s15, s3, 3\ns_add_u32 s15, s15, s69\ns_lshl_b32 s15, s15, 7\ns_add_u32 s15, s15, {FA}')
    if 'early' in o:
        for k in range(2,5):
            for x in lR(k,k): em(x)
        g.wait('hs')
    else: g.wait0()
    a('s_barrier')
    g.stamp(3)
    w0(g,'L_F_s',lambda:post(g,2,253,'s10'))
    for k in range(2 if 'early' in o else 5):
        for x in lR(k,k): em(x)
    w0(g,'L_F_h',lambda:(a('v_mov_b32 v2, 0'),spin2(g,'L_F_H',2,fload(2,253,'s11'))),16)
    a('s_barrier')
    g.stamp(4)
    for s in range(4):
        for x in lH(s): em(x)
    RK=[0,1,2,3,4,0,4,0,4,1,2,3]
    a('.p2align 3')
    for s in range(12):
        tags=[f'H{s}',f'R{s}']
        if s==8: tags.append('fl')
        g.wait(*tags,lgkm=(0 if s==8 else 5) if 5<=s<=8 else None)
        if s==8:
            if 'noC' not in o: w0(g,'L_F_a',lambda:spin2(g,'L_F_A',252,fload(252,253,'s15')),20)
            a('s_barrier\n.p2align 3')
        k=RK[s]
        for m in range(4):
            for j in range(5):
                d=16*j+4*m; c='0' if s==0 else f'v[{d}:{d+3}]'
                a(f'v_mfma_f32_16x16x32_bf16 v[{d}:{d+3}], v[{R(k,j)}:{R(k,j)+3}], v[{H(s,m)}:{H(s,m)+3}], {c}')
            if s+4<12:
                x=lH(s+4)
                if m==0: em(x[0])
                em(x[1+m])
        pst=[]
        if s==0: pst=lL(0,5)
        if s in(1,2,3): pst=lR(s,s+8)
        if s in(4,5,6): pst=lL(RK[s+2],s+2)
        if s==4: pst+=['s_mov_b32 exec_hi, 0',(fload(252,253,'s15'),'fl'),'s_mov_b64 exec, -1']
        if s==8:
            pst=['v_and_b32 v192, 15, v251','v_lshrrev_b32 v193, 4, v251','v_lshlrev_b32 v194, 3, v192','v_lshl_add_u32 v195, v193, 14, v194',
                  's_lshl_b32 s14, s68, 2','s_add_u32 s14, s14, s5','s_lshl_b32 s10, s14, 7',f's_add_u32 s11, s10, {GG}',f's_mul_i32 s72, s69, {20*16384}','s_add_u32 s72, s72, s10',f's_add_u32 s72, s72, {AT}']
            for j in range(5): pst+=[(f'buffer_load_dwordx2 v[{180+2*j}:{181+2*j}], v195, s[52:55], s72 offen sc1','A'),'s_add_u32 s72, s72, 65536']
            pst.append((f'buffer_load_dwordx2 v[190:191], v194, s[52:55], s11 offen sc1','A'))
        if s==9:
            for mu in range(1,4): pst+=[f's_xor_b32 s10, s5, {mu}','s_mul_i32 s10, s10, 15360',f'v_add_u32 v{195+mu}, s10, v244']
            pst+=['s_mul_i32 s10, s5, 15360','v_add_u32 v199, s10, v244','s_lshl_b32 s10, s5, 12','s_add_u32 s10, s10, 61440',
                   'v_mul_u32_u24 v200, 176, v192','v_lshl_add_u32 v200, v193, 3, v200','v_add_u32 v200, s10, v200','s_mov_b32 s11, 0x1999999a',
                   's_mul_i32 s14, s14, 20480','s_mul_i32 s72, s69, 160','s_add_u32 s14, s14, s72']
            for n in range(3):
                pst+=[f'v_add_u32 v207, {64*n}, v251','v_mul_hi_u32 v208, v207, s11','v_add_u32 v209, v207, v208',f'v_lshl_add_u32 v{201+n}, v209, 4, s10','v_mul_u32_u24 v208, 1120, v208',f'v_lshl_add_u32 v{204+n}, v207, 4, v208']
        for x in pst: em(x)
    g.stamp(5)
    for mu in range(1,4):
        for j in range(5): a(f'ds_write_b128 v{195+mu}, v[{16*j+4*mu}:{16*j+4*mu+3}] offset:{(mu-1)*5120+j*1024}')
    a('s_waitcnt lgkmcnt(0)\ns_barrier')
    for j in range(5):
        for k in range(3): a(f'ds_read_b128 v[{16*j+4*k+4}:{16*j+4*k+7}], v199 offset:{k*5120+j*1024}')
    g.wait('A')
    for j in range(5):
        t=80+4*j
        a(f'v_lshlrev_b32 v{t}, 16, v{180+2*j}\nv_and_b32 v{t+1}, 0xffff0000, v{180+2*j}\nv_lshlrev_b32 v{t+2}, 16, v{181+2*j}\nv_and_b32 v{t+3}, 0xffff0000, v{181+2*j}')
        for r in range(4): a(f'v_mul_f32 v{t+r}, v190, v{t+r}')
    for j in range(5):
        t=80+4*j; d=16*j
        a(f's_waitcnt lgkmcnt({12-3*j+j})')
        for r in range(4): a(f'v_add_f32 v{d+r}, v{d+r}, v{d+4+r}\nv_add_f32 v{d+8+r}, v{d+8+r}, v{d+12+r}')
        for r in range(4): a(f'v_add_f32 v{d+r}, v{d+r}, v{d+8+r}')
        for r in range(4): a(f'v_fmac_f32 v{t+r}, v191, v{d+r}')
        a(f'v_cvt_pk_bf16_f32 v{t}, v{t}, v{t+1}\nv_cvt_pk_bf16_f32 v{t+1}, v{t+2}, v{t+3}\nds_write_b64 v200, v[{t}:{t+1}] offset:{32*j}')
    for n in range(3): a(f'ds_read_b128 v[{100+4*n}:{103+4*n}], v{201+n}')
    for n in range(3):
        a(f's_waitcnt lgkmcnt({2-n})')
        if n==2: a('s_mov_b32 exec_hi, 0')
        a(f'buffer_store_dwordx4 v[{100+4*n}:{103+4*n}], v{204+n}, s[76:79], s14 offen')
    g.stamp(6)
    if 'st' in o: a('s_waitcnt vmcnt(0)')
    g.dump('L_F_d')
    a('s_endpgm\nL_F_end:')
```

```python
import re
def regs(tok):
    tok=tok.strip().lstrip('-').strip('|')
    m=re.fullmatch(r'([vs])(\d+)',tok)
    if m: return {(m.group(1),int(m.group(2)))}
    m=re.fullmatch(r'([vs])\[(\d+):(\d+)\]',tok)
    if m: return {(m.group(1),i) for i in range(int(m.group(2)),int(m.group(3))+1)}
    if tok=='vcc': return {('s','vcc')}
    if tok=='exec': return {('s','exec')}
    if tok=='m0': return {('s','m0')}
    return set()
TRANS=('v_exp_f32','v_log_f32','v_rcp_f32','v_rsq_f32','v_sqrt_f32','v_sin_f32','v_cos_f32')
def parse(line):
    s=line.split(';')[0].strip()
    if not s or s.endswith(':') or s.startswith('.'): return None
    p=s.split(None,1); op=p[0]; ops=[]
    if len(p)>1:
        for t in p[1].split(','):
            ops.append(t.strip().split()[0] if t.strip() else '')
    R=[regs(t) for t in ops]
    d=dict(op=op,w=set(),r=set(),kind='s',txt=s,c=set())
    U=lambda l:set().union(*l) if l else set()
    if op.startswith('v_mfma'):
        d.update(kind='mfma',w=R[0],r=U(R[1:3]),c=R[3],p=8 if '32x32' in op else 4)
    elif op.startswith('v_'):
        d['kind']='valu'
        if op.startswith('v_cmp'): d['w']=R[0]; d['r']=U(R[1:])
        elif op.startswith('v_permlane') and 'swap' in op: d['w']=U(R);d['r']=U(R)
        else:
            d['w']=R[0]; d['r']=U(R[1:])
            if op.startswith(('v_fmac','v_dot2c','v_writelane')) or 'dpp' in s or 'row_' in s or 'quad_perm' in s: d['r']|=R[0]
            if op.startswith('v_cndmask') and len(ops)==3: d['r']|={('s','vcc')}
            if '_co_' in op: d['w']|=R[1]
    elif op.startswith(('buffer_','global_')):
        d['kind']='vmem'
        if 'load' in op and ' lds' not in s: d['w']=R[0]; d['r']=U(R[1:])
        else: d['r']=U(R)
        d['sd']=set()
        if 'store' in op and ('x4' in op or 'x3' in op): d['sd']=R[0] if op.startswith('buffer') else R[1]
    elif op.startswith('ds_'):
        d['kind']='ds'
        if 'read' in op: d['w']=R[0]; d['r']=U(R[1:])
        else: d['r']=U(R)
        d['sd']=U(R[1:]) if ('b128' in op or 'b96' in op) and 'write' in op else set()
    else:
        if op.startswith(('s_cmp','s_waitcnt','s_barrier','s_cbranch','s_branch','s_nop','s_setprio','s_endpgm')): d['r']=U(R)
        else: d['w']=R[0] if R else set(); d['r']=U(R[1:])
    return d
def need(a,b):
    v=lambda s:{x for x in s if x[0]=='v'}
    sg=lambda s:{x for x in s if x[0]=='s'}
    n=0
    if a['kind']=='valu':
        w=a['w']
        if b['kind']=='mfma' and v(w)&(b['r']|b['c']): n=max(n,2)
        if b['kind']=='valu':
            if a['op'].startswith(TRANS) and v(w)&b['r']: n=max(n,1)
            if b['op'].startswith(('v_readfirstlane','v_readlane')) and v(w)&b['r']: n=max(n,1)
            if ('row_' in b['txt'] or 'quad_perm' in b['txt'] or 'permlane' in b['op']) and v(w)&b['r']: n=max(n,2)
            if sg(w)&b['r']: n=max(n,2)
            if 'dot2' in a['op'] and v(w)&(b['r']|b['w']) and a['op']!=b['op']: n=max(n,3)
        if b['kind']=='vmem' and sg(w)&b['r']: n=max(n,5)
        if 'dot2' in a['op'] and b['kind'] in('vmem','ds') and v(w)&b['r']: n=max(n,3)
    if a['kind']=='mfma':
        big=12 if a['p']==8 else 8
        if b['kind']=='mfma':
            if a['w']&b['r']: n=max(n,big)
            if a['w']&b['c'] and (a['w']!=b['c'] or a['p']!=b['p']): n=max(n,big-2)
        elif b['kind'] in('valu','vmem','ds'):
            if a['w']&(b['r']|b['w']): n=max(n,big)
            if b['kind']=='valu' and a['c']&b['w']: n=max(n,7 if a['p']==8 else 3)
    if a['kind'] in('vmem','ds') and a.get('sd') and b['kind']=='valu' and a['sd']&b['w']: n=max(n,2)
    if a['kind']=='s' and ('s','m0') in a['w'] and b['kind']=='vmem' and ' lds' in b['txt']: n=max(n,1)
    if a['kind']=='s' and ('s','exec') in a['w'] and b['kind']=='valu' and ('row_' in b['txt'] or 'quad_perm' in b['txt']): n=max(n,1)
    return n
def pad(lines):
    out=[]; hist=[]; tot=0
    for line in lines:
        d=parse(line)
        if d is None: out.append(line); continue
        k=0; dist=0
        for h in reversed(hist):
            k=max(k,need(h,d)-dist)
            dist+=h['st']
            if dist>=14: break
        if k>0:
            out.append(f's_nop {k-1}'); tot+=k
            hist.append(dict(op='s_nop',kind='s',w=set(),r=set(),c=set(),txt='',st=k))
        d['st']=int(d['txt'].split()[1])+1 if d['op']=='s_nop' else 1
        hist.append(d); hist=hist[-20:]
        out.append(line)
    return out,tot
```

```python
from common import *
def role_T(g):
    a=g.a; g.vm=[]
    a('.p2align 3\nL_T:\ns_setprio 3')
    g.pref('T',3,255)
    a('s_lshl_b32 s10, s3, 3\ns_add_u32 s10, s10, s4')
    a('v_lshrrev_b32 v2, 4, v1\nv_and_b32 v3, 15, v1\nv_lshlrev_b32 v4, 4, v3')
    a('v_mul_u32_u24 v5, 1280, v2\nv_add_u32 v5, v5, v4')
    a('s_lshl_b32 s11, s10, 2\ns_add_u32 s11, s11, s5\ns_mul_i32 s12, s11, 10240\ns_add_u32 s13, s12, 5120')
    a('s_waitcnt lgkmcnt(0)')
    g.srd(60,16,2621440); g.srd(64,42,1280); g.srd(52,48,0x1000000); g.srd(56,46,256)
    a(f's_cmp_lg_u32 s10, 0\ns_cbranch_scc1 L_T_z\nv_mov_b32 v72, 0\nv_mov_b32 v73, 0\nv_mov_b32 v74, 0\nv_mov_b32 v75, 0\nv_lshlrev_b32 v76, 4, v0\ns_mov_b32 s14, {FL}')
    for i in range(4): a('buffer_store_dwordx4 v[72:75], v76, s[52:55], s14 offen sc1\ns_add_u32 s14, s14, 4096')
    a('s_waitcnt vmcnt(0)\ns_barrier')
    w0(g,'L_T_z',lambda:a('v_mov_b32 v77, 1\nbuffer_store_dword v77, off, s[56:59], 0 sc1'))
    for m in range(2):
        for i in range(5): g.v(f'buffer_load_dwordx4 v[{10+m*20+i*4}:{13+m*20+i*4}], v5, s[60:63], s{12+m} offen offset:{i*256}',f'x{m}{i}')
    for i in range(5): g.v(f'buffer_load_dwordx4 v[{50+i*4}:{53+i*4}], v4, s[64:67], 0 offen offset:{i*256}','gw')
    a(f's_mul_i32 s14, s5, {8*1312+128}\nv_mul_u32_u24 v6, 1312, v2\nv_add3_u32 v6, v6, v4, s14')
    a(f'v_sub_u32 v7, 3, v2\nv_mul_u32_u24 v7, {8*1312+128}, v7\nv_bfe_u32 v8, v1, 2, 2\nv_sub_u32 v8, 3, v8\nv_mul_u32_u24 v8, 1312, v8')
    a('v_and_b32 v9, 3, v1\nv_lshlrev_b32 v70, 3, v9\ns_mul_i32 s14, s5, 320\nv_add3_u32 v7, v7, v8, v70\nv_add_u32 v7, s14, v7')
    a('v_bfe_u32 v8, v1, 2, 2\nv_lshlrev_b32 v8, 14, v8\nv_lshlrev_b32 v70, 6, v2\nv_lshlrev_b32 v9, 4, v9\nv_add3_u32 v8, v8, v70, v9')
    a(f's_mul_i32 s14, s5, {40*16384}\ns_lshl_b32 s15, s10, 8\ns_sub_u32 s14, s14, s15\ns_add_u32 s14, s14, {UT+252*64}')
    for m in range(2):
        for i in range(5):
            g.wait(f'x{m}{i}')
            a(f'ds_write_b128 v6, v[{10+m*20+i*4}:{13+m*20+i*4}] offset:{m*5248+i*256}')
    a('s_waitcnt lgkmcnt(0)\ns_barrier')
    for q in range(10):
        a(f'ds_read_b64_tr_b16 v[{72+q*4}:{73+q*4}], v7 offset:{5248+q*32}\nds_read_b64_tr_b16 v[{74+q*4}:{75+q*4}], v7 offset:{q*32}')
        if q>=3:
            a('s_waitcnt lgkmcnt(6)')
            g.v(f'buffer_store_dwordx4 v[{72+(q-3)*4}:{75+(q-3)*4}], v8, s[52:55], s14 offen sc1'); a('s_add_u32 s14, s14, 65536')
    for q in range(7,10):
        a(f's_waitcnt lgkmcnt({(9-q)*2})')
        g.v(f'buffer_store_dwordx4 v[{72+q*4}:{75+q*4}], v8, s[52:55], s14 offen sc1'); a('s_add_u32 s14, s14, 65536')
    g.wait('gw')
    a('v_mov_b32 v112, 0\nv_mov_b32 v113, 0\ns_mov_b32 s15, 0xffff0000')
    for i in range(20):
        a(f'v_lshlrev_b32 v121, 16, v{50+i}\nv_and_b32 v122, s15, v{50+i}')
        for m in range(2):
            x=10+m*20+i
            a(f'v_lshlrev_b32 v123, 16, v{x}\nv_and_b32 v{x}, s15, v{x}\nv_fmac_f32 v{112+m}, v123, v121\nv_fmac_f32 v{112+m}, v{x}, v122')
    for sh in (8,4,2,1):
        for m in range(2): a(f'v_add_f32_dpp v{112+m}, v{112+m}, v{112+m} row_ror:{sh} row_mask:0xf bank_mask:0xf')
    a('v_cvt_pk_bf16_f32 v114, v112, v113\nv_lshlrev_b32 v112, 16, v114\nv_and_b32 v113, 0xffff0000, v114')
    for m in range(2): a(f'v_mul_f32 v{112+m}, 0xbfb8aa3b, v{112+m}')
    for m in range(2): a(f'v_exp_f32 v{112+m}, v{112+m}')
    for m in range(2): a(f'v_add_f32 v{112+m}, 1.0, v{112+m}')
    for m in range(2): a(f'v_rcp_f32 v{112+m}, v{112+m}')
    a('v_cvt_pk_bf16_f32 v114, v112, v113\nv_lshlrev_b32 v116, 16, v114\nv_and_b32 v118, 0xffff0000, v114')
    a('v_sub_f32 v112, 1.0, v116\nv_sub_f32 v113, 1.0, v118\nv_cvt_pk_bf16_f32 v114, v112, v113\nv_lshlrev_b32 v117, 16, v114\nv_and_b32 v119, 0xffff0000, v114')
    a(f's_lshl_b32 s11, s11, 6\ns_add_u32 s11, s11, {GG}\nv_lshlrev_b32 v2, 3, v2')
    a('s_mov_b32 exec_lo, 0x10001\ns_mov_b32 exec_hi, 0x10001')
    a('buffer_store_dwordx2 v[116:117], v2, s[52:55], s11 offen sc1\nbuffer_store_dwordx2 v[118:119], v2, s[52:55], s11 offen offset:32 sc1\ns_mov_b64 exec, -1')
    w0(g,'L_T_i',lambda:a(iload(120)))
    a(f's_lshl_b32 s10, s10, 2\ns_add_u32 s10, s10, {FT}\nv_lshlrev_b32 v3, 8, v1')
    g.stamp(1)
    g.wait0(); a('s_barrier')
    w0(g,'L_T_s',lambda:(spin2(g,'L_T_I',120,iload(120)),a('s_mov_b64 exec, 0xff'),post(g,2,3,'s10')))
    g.dump('L_T_d')
    a('s_endpgm\nL_T_end:')
def role_W(g):
    a=g.a; g.vm=[]
    a('.p2align 3\nL_W:\ns_setprio 2')
    g.pref('W',3,255)
    a('s_lshl_b32 s10, s3, 2\ns_add_u32 s10, s10, s4\ns_sub_u32 s10, s10, 8')
    a('v_lshrrev_b32 v2, 4, v1\nv_and_b32 v3, 15, v1\nv_lshlrev_b32 v4, 4, v3')
    a('v_mul_u32_u24 v5, 1280, v2\nv_add_u32 v5, v5, v4')
    a('s_lshl_b32 s11, s10, 2\ns_add_u32 s11, s11, s5\ns_mul_i32 s12, s11, 15360\ns_add_u32 s13, s12, 5120\ns_add_u32 s14, s12, 10240')
    a('s_waitcnt lgkmcnt(0)')
    g.srd(60,40,1966080); g.srd(52,48,0x1000000); g.srd(56,46,256)
    for m in range(3):
        for i in range(5): g.v(f'buffer_load_dwordx4 v[{10+m*20+i*4}:{13+m*20+i*4}], v5, s[60:63], s{12+m} offen offset:{i*256}',f'x{m}{i}')
    a(f's_mul_i32 s15, s5, {12*1312}\nv_mul_u32_u24 v6, 1312, v2\nv_add3_u32 v6, v6, v4, s15')
    a('v_bfe_u32 v7, v1, 2, 3\nv_mul_u32_u24 v7, 1312, v7\nv_lshrrev_b32 v8, 5, v1\nv_mul_u32_u24 v9, 640, v8\nv_and_b32 v70, 3, v1\nv_lshlrev_b32 v70, 3, v70')
    a('s_mul_i32 s15, s5, 160\nv_add3_u32 v7, v7, v9, v70\nv_add_u32 v7, s15, v7')
    a('v_mul_u32_u24 v8, 983040, v8\nv_and_b32 v9, 31, v1\nv_lshlrev_b32 v9, 4, v9\nv_add_u32 v8, v8, v9\nv_add_u32 v9, 4096, v8')
    for p in range(3):
        a(f's_mul_i32 s{12+p}, s10, 3\ns_add_u32 s{12+p}, s{12+p}, {p}\ns_and_b32 s15, s{12+p}, 1\ns_lshl_b32 s15, s15, 9\ns_lshr_b32 s{12+p}, s{12+p}, 1\ns_mul_i32 s{12+p}, s{12+p}, 5120\ns_add_u32 s{12+p}, s{12+p}, s15')
        a(f's_mul_i32 s15, s5, 245760\ns_add_u32 s15, s15, {WDF}\ns_add_u32 s{12+p}, s{12+p}, s15')
    for m in range(3):
        for i in range(5):
            g.wait(f'x{m}{i}')
            a(f'ds_write_b128 v6, v[{10+m*20+i*4}:{13+m*20+i*4}] offset:{m*5248+i*256}')
    a('s_waitcnt lgkmcnt(0)\ns_barrier')
    def st(n):
        p,j=divmod(n,5)
        g.v(f'buffer_store_dwordx4 v[{72+n*4}:{75+n*4}], v{9 if j==4 else 8}, s[52:55], s{12+p} offen offset:{(j&3)*1024} sc1')
    for n in range(15):
        p,j=divmod(n,5)
        for e in range(2): a(f'ds_read_b64_tr_b16 v[{72+n*4+2*e}:{73+n*4+2*e}], v7 offset:{(16*p+8*e)*1312+j*32}')
        if n>=3: a('s_waitcnt lgkmcnt(6)'); st(n-3)
    for n in range(12,15): a(f's_waitcnt lgkmcnt({(14-n)*2})'); st(n)
    w0(g,'L_W_i',lambda:a(iload(140)))
    a(f's_lshl_b32 s10, s10, 2\ns_add_u32 s10, s10, {FW}\nv_lshlrev_b32 v3, 7, v1')
    g.stamp(1)
    g.wait0(); a('s_barrier')
    w0(g,'L_W_s',lambda:(spin2(g,'L_W_I',140,iload(140)),a('s_mov_b64 exec, 0xff'),post(g,2,3,'s10')))
    g.dump('L_W_d')
    a('s_endpgm\nL_W_end:')
```

```python
import sys
from common import *
from tw import *
from conv import *
from ffn import *
import lint
out=sys.argv[1]; opt=set(sys.argv[2].split(',')) if len(sys.argv)>2 else set()
ref=open('gated_mix__ssm_conv_s4__glu_gated_bilinear__prompt.s.ref').read()
head=ref[:ref.index(NAME+':')].replace('grid=(5120,1,1) block=(256,1,1) lds=0','grid=(512,1,1) block=(256,1,1) lds=81920')
tail=ref[ref.index('.section .rodata'):]
g=Gen(opt); a=g.a
a('s_cmp_ge_u32 s2, 512\ns_cbranch_scc1 L_exit')
a('s_load_dwordx16 s[16:31], s[0:1], 0\ns_load_dwordx16 s[32:47], s[0:1], 64\ns_load_dwordx2 s[48:49], s[0:1], 128')
if 'st' in opt:
    for k in range(82,96): a(f's_mov_b32 s{k}, 0')
g.stamp(0)
a('v_lshrrev_b32 v2, 6, v0\nv_and_b32 v1, 63, v0\ns_and_b32 s3, s2, 7\nv_readfirstlane_b32 s5, v2\ns_bfe_u32 s4, s2, 0x50003')
if 'scr' in opt: a('s_bfe_u32 s3, s2, 0x30005\ns_and_b32 s4, s2, 31')
a('s_cmp_lt_u32 s2, 256\ns_cbranch_scc1 '+('L_exit' if 'noF' in opt else 'L_F'))
a('s_cmp_ge_u32 s4, 12\ns_cbranch_scc1 '+('L_exit' if 'noC' in opt else 'L_C'))
a('s_cmp_ge_u32 s4, 8\ns_cbranch_scc1 L_W\ns_branch L_T\nL_exit:\ns_endpgm')
role_F(g); role_C(g); role_T(g); role_W(g)
L,n=lint.pad(g.L)
if 'padc' in opt: L+=['s_endpgm']*60000
if 'clk' in opt: L=[x.replace('s_memrealtime','s_memtime') for x in L]
open(out,'w').write(head+NAME+':\n'+'\n'.join(L)+'\n'+tail)
print(out,len(L),'lines',n,'nop states')
```

```python
from common import *
def role_F(g):
    a=g.a; g.vm=[]; o=g.opt
    a('.p2align 3\nL_F:')
    g.pref('F',3,255)
    a(f's_setprio 1\ns_lshl_b32 s98, s3, 7\ns_add_u32 s98, s98, {FW}\nv_lshlrev_b32 v253, 2, v1')
    a('s_and_b32 s10, s3, 3\ns_lshl_b32 s10, s10, 2\ns_and_b32 s11, s4, 3\ns_add_u32 s10, s10, s11')
    a('s_lshr_b32 s11, s3, 2\ns_lshl_b32 s11, s11, 3\ns_lshr_b32 s12, s4, 2\ns_add_u32 s11, s11, s12')
    a('s_and_b32 s12, s5, 1\ns_lshr_b32 s13, s5, 1')
    a('s_mul_i32 s14, s12, 192\ns_lshl_b32 s15, s13, 1\ns_mul_i32 s50, s10, 192\ns_mov_b32 s51, 0x15555556')
    for i in range(3):
        a(f'v_add_u32 v2, s14, v1' if i==0 else 'v_add_u32 v2, 64, v2')
        a(f'v_mul_hi_u32 v3, v2, s51\nv_mul_u32_u24 v4, 12, v3\nv_sub_u32 v4, v2, v4\nv_xor_b32 v4, s15, v4\nv_lshlrev_b32 v4, 4, v4\nv_mul_u32_u24 v3, 3072, v3\nv_add3_u32 v{215+i}, v3, v4, s50')
        if i<2: a('s_sub_u32 s50, s50, 1024')
    a('s_lshl_b32 s14, s11, 2\ns_add_u32 s14, s14, s5\ns_mul_i32 s14, s14, 40960')
    a('v_lshrrev_b32 v2, 3, v1\nv_mul_u32_u24 v2, 1280, v2\nv_and_b32 v3, 7, v1\nv_lshrrev_b32 v4, 4, v1\nv_xor_b32 v3, v3, v4\nv_lshlrev_b32 v3, 4, v3\nv_xor_b32 v5, 64, v3')
    a('v_add3_u32 v218, v2, v3, s14\ns_add_u32 s14, s14, 9216\nv_add3_u32 v219, v2, v5, s14\nv_add_u32 v220, 18432, v218\nv_add_u32 v221, 18432, v219')
    if 'rot0' in o: a('s_mov_b32 s99, 0\ns_mov_b32 s100, 0')
    else:
        a('s_lshr_b32 s99, s4, 2')
        if 'rot1' not in o: a('s_and_b32 s100, s4, 3\ns_lshl_b32 s100, s100, 1\ns_add_u32 s99, s99, s100\ns_and_b32 s99, s99, 7')
        a('s_mul_i32 s99, s99, 5\ns_lshr_b32 s99, s99, 2\ns_lshl_b32 s100, s99, 7\ns_mul_i32 s99, s99, 196608')
    a('s_mul_i32 s70, s5, 3072\ns_lshl_b32 s71, s5, 12\ns_add_u32 s71, s71, 49152')
    a('s_cmp_eq_u32 s13, 0\ns_waitcnt lgkmcnt(0)\ns_cselect_b32 s64, s36, s38\ns_cselect_b32 s65, s37, s39\ns_mov_b32 s66, 1966080\ns_mov_b32 s67, 0x20000')
    g.srd(60,16,2621440)
    def dW(b):
        r=[f's_add_u32 m0, s70, {(b%4)*12288}']
        if b: r+=['s_add_u32 s99, s99, 98304']
        if b and b%2==0: r+=['s_cmp_eq_u32 s99, 1966080','s_cselect_b32 s99, 0, s99']
        return r+[(f'buffer_load_dwordx4 v{215+i}, s[64:67], s99 offen offset:{1024*i} lds',f'W{b}') for i in range(3)]
    def dX(n,h=None):
        r=[f's_add_u32 m0, s71, {(n%2)*16384}']
        if n and h!=1: r+=['s_add_u32 s100, s100, 128','s_cmp_eq_u32 s100, 1280','s_cselect_b32 s100, 0, s100']
        return r+[(f'buffer_load_dwordx4 v{218+i}, s[60:63], s100 offen offset:{1024*i} lds',f'X{n}') for i in (range(4) if h is None else range(2*h,2*h+2))]
    def dD(kind,slot,n0):
        if kind=='w': r=[f's_add_u32 m0, s70, {slot*12288}']; c=3
        else: r=[f's_add_u32 m0, s71, {slot*16384}']; c=4
        r.append(f's_add_u32 s72, s74, {(25+n0)*1024}')
        return r+[(f'buffer_load_dwordx4 v244, s[52:55], s72 offen offset:{1024*i} sc1 lds','D') for i in range(c)]
    def em(x):
        if isinstance(x,tuple):
            if 'fakev' in o and x[0].endswith(' lds'): x=(x[0][:-4].replace('dwordx4 ','dwordx4 v[224:227], '),x[1])
            g.v(*x)
        else: a(x)
    for x in dW(0)+dX(0)+dW(1)+dW(2)+dX(1)+dW(3): em(x)
    g.srd(52,48,0x1000000); g.srd(56,46,256); g.srd(76,44,2621440)
    a('v_bfe_u32 v2, v1, 4, 1\nv_lshrrev_b32 v3, 5, v1\nv_bfe_u32 v4, v1, 2, 2\nv_lshl_add_u32 v4, v3, 3, v4\nv_mul_u32_u24 v4, 192, v4\nv_mul_u32_u24 v5, 6144, v2\nv_and_b32 v6, 3, v1\nv_lshlrev_b32 v6, 3, v6\nv_add3_u32 v4, v4, v5, v6')
    a('s_mul_i32 s14, s13, 3')
    for jj in range(3): a(f'v_xor_b32 v5, s14, v2\nv_lshl_add_u32 v{208+jj}, v5, 5, v4\ns_add_u32 s14, s14, 1')
    a('v_and_b32 v4, 31, v1\nv_bfe_u32 v5, v1, 1, 3\nv_xor_b32 v5, v5, v3\nv_lshlrev_b32 v4, 7, v4\ns_lshl_b32 s14, s12, 13\ns_add_u32 s14, s14, 49152\nv_add_u32 v4, s14, v4')
    for u in range(4): a(f'v_xor_b32 v6, {2*u}, v5\nv_lshl_add_u32 v{211+u}, v6, 4, v4')
    a('v_lshlrev_b32 v244, 4, v1')
    a('s_lshl_b32 s68, s3, 2\ns_lshr_b32 s69, s4, 3\ns_add_u32 s68, s68, s69\ns_and_b32 s69, s4, 7')
    a(f's_lshl_b32 s74, s69, 2\ns_add_u32 s74, s74, s5\ns_mul_i32 s74, s74, 61440\ns_add_u32 s74, s74, {WDF}')
    a(f's_lshl_b32 s75, s68, 2\ns_add_u32 s75, s75, s5\ns_mul_i32 s75, s75, 49152')
    a('v_lshlrev_b32 v4, 11, v3\nv_lshl_add_u32 v4, v2, 9, v4\nv_and_b32 v5, 15, v1\nv_lshl_add_u32 v4, v5, 4, v4')
    a('s_lshl_b32 s14, s12, 8\ns_lshl_b32 s15, s13, 10\ns_add_u32 s14, s14, s15\nv_add_u32 v245, s14, v4\nv_xor_b32 v246, 256, v245\nv_xor_b32 v247, 1024, v245\nv_xor_b32 v248, 1280, v245')
    a('v_add_u32 v249, s70, v244\nv_add_u32 v250, s71, v244\nv_mov_b32 v251, v1')
    a('s_lshl_b32 s50, s11, 1\ns_add_u32 s50, s50, s12\ns_lshl_b32 s50, s50, 4\ns_add_u32 s50, s50, s10\ns_lshl_b32 s50, s50, 1\ns_add_u32 s50, s50, s13\ns_mul_i32 s50, s50, 6144\ns_add_u32 s51, s50, 4096')
    WF=lambda b,jj,u:96+24*(b&1)+8*jj+4*u
    XF=lambda n,tt,u:144+32*(n&1)+16*tt+4*u
    def rW(b): return [f'ds_read_b64_tr_b16 v[{WF(b,jj,u)+2*e}:{WF(b,jj,u)+2*e+1}], v{208+jj} offset:{(b%4)*12288+(16*u+4*e)*192}' for u in range(2) for jj in range(3) for e in range(2)]
    def rX(n): return [f'ds_read_b128 v[{XF(n,tt,u)}:{XF(n,tt,u)+3}], v{211+u} offset:{(n%2)*16384+4096*tt}' for u in range(4) for tt in range(2)]
    g.wait('W0','X0'); a('s_barrier')
    g.stamp(1)
    for k,x in enumerate(rX(0)+rW(0)):
        a(x)
        if k==11: a('s_waitcnt lgkmcnt(6)')
    a('.p2align 3')
    for b in range(20):
        tags=[f'W{b+1}']+([f'X{(b+1)//2}'] if b&1 else [])
        if b in (11,15): tags.append('fl')
        g.wait(*tags,lgkm=0)
        if b==11: w0(g,'L_F_i',lambda:spin2(g,'L_F_I',223,iload(223))); a('.p2align 3\ns_nop 0')
        if b==15: w0(g,'L_F_p',lambda:spin2(g,'L_F_W',223,fload(223,253,'s98')),32); a('.p2align 3\ns_nop 0')
        a('s_barrier')
        dm=[]; fl=[]
        if b+4<20: dm+=dW(b+4)
        if 'burst' in o:
            if b%2==0 and b//2+2<10: dm+=dX(b//2+2)
        elif b//2+2<10:
            dm+=dX(b//2+2,b&1)
        if b==8: fl=['s_mov_b64 exec, 1',(iload(223),'fl'),'s_mov_b64 exec, -1']
        if b==12: fl=['s_mov_b32 exec_hi, 0',(fload(223,253,'s98'),'fl'),'s_mov_b64 exec, -1']
        if b==16: dm+=dD('w',0,0)+dD('x',0,3)
        if b==17: dm+=dD('w',1,7)
        if b==18: dm+=dD('w',2,10)+dD('x',1,13)
        if b==19: dm+=dD('w',3,17)
        rd=[]
        if b<19:
            w=rW(b+1)
            if b&1:
                x=rX((b+1)//2); rd=x[:2]+w[:6]+x[2:4]+w[6:]+x[4:]
            else: rd=w
        if 'nord' in o: rd=[]
        if 'nodma' in o and b<16: dm=[]
        n=0; nd=sum(isinstance(x,tuple) for x in dm); pos=range(12) if 'burst' in o else {0:[],3:[0,4,8],5:[0,2,5,7,9],7:[0,1,3,5,6,8,10]}[nd]
        for u in range(2):
            for jj in range(3):
                for tt in range(2):
                    d=16*(2*jj+tt); c='0' if (b==0 and u==0) else f'v[{d}:{d+15}]'
                    xf=XF(b//2,tt,2*(b&1)+u); wf=WF(b,jj,u)
                    if 'nomf' not in o: a(f'v_mfma_f32_32x32x16_bf16 v[{d}:{d+15}], v[{wf}:{wf+3}], v[{xf}:{xf+3}], {c}')
                    k=2 if len(rd)<=2*(10-n) else 3
                    for _ in range(k):
                        if rd: a(rd.pop(0))
                    if n in pos:
                        while dm:
                            x=dm.pop(0); em(x)
                            if isinstance(x,tuple): break
                    n+=1
        assert not rd
        for x in dm+fl: em(x)
    g.stamp(2)
    for jj in range(3):
        for tt in range(2):
            d=16*(2*jj+tt); h=96+4*(2*jj+tt)
            for r in range(8): a(f'v_mul_f32 v{d+r}, v{d+r}, v{d+8+r}')
            for q in range(4): a(f'v_cvt_pk_bf16_f32 v{h+q}, v{d+2*q}, v{d+2*q+1}')
            off=jj*2048+tt*1024
            g.v(f'buffer_store_dwordx4 v[{h}:{h+3}], v244, s[52:55], s{50+off//4096} offen offset:{off%4096} sc1','hs')
    R=lambda k,j:80+20*k+4*j
    H=lambda s,m:180+16*(s&3)+4*m
    def lR(k,s):
        return [f's_add_u32 s72, s74, {s*5120}',f's_add_u32 s73, s74, {s*5120+4096}']+[(f'buffer_load_dwordx4 v[{R(k,j)}:{R(k,j)+3}], v244, s[52:55], s{72+j//4} offen offset:{(j&3)*1024} sc1',f'R{s}') for j in range(5)]
    def lH(s):
        return [f's_add_u32 s14, s75, {HF+s*4096}']+[(f'buffer_load_dwordx4 v[{H(s,m)}:{H(s,m)+3}], v{245+m}, s[52:55], s14 offen sc1',f'H{s}') for m in range(4)]
    def lL(k,s):
        r=[]
        for j in range(5):
            n=(s-5)*5+j
            for (n0,c,v,off) in ((0,3,249,0),(3,4,250,0),(7,3,249,12288),(10,3,249,24576),(13,4,250,16384),(17,3,249,36864)):
                if n0<=n<n0+c: r.append(f'ds_read_b128 v[{R(k,j)}:{R(k,j)+3}], v{v} offset:{off+(n-n0)*1024}')
        return r
    a(f's_lshl_b32 s11, s11, 5\ns_add_u32 s10, s10, s11\ns_lshl_b32 s10, s10, 2\ns_add_u32 s10, s10, {FH}\ns_lshr_b32 s11, s68, 1\ns_lshl_b32 s11, s11, 7\ns_add_u32 s11, s11, {FH}\ns_lshl_b32 s15, s3, 3\ns_add_u32 s15, s15, s69\ns_lshl_b32 s15, s15, 7\ns_add_u32 s15, s15, {FA}')
    if 'early' in o:
        for k in range(2,5):
            for x in lR(k,k): em(x)
        g.wait('hs')
    else: g.wait0()
    a('s_barrier')
    g.stamp(3)
    w0(g,'L_F_s',lambda:post(g,2,253,'s10'))
    for k in range(2 if 'early' in o else 5):
        for x in lR(k,k): em(x)
    w0(g,'L_F_h',lambda:(a('v_mov_b32 v2, 0'),spin2(g,'L_F_H',2,fload(2,253,'s11'))),16)
    a('s_barrier')
    g.stamp(4)
    for s in range(4):
        for x in lH(s): em(x)
    RK=[0,1,2,3,4,0,4,0,4,1,2,3]
    a('.p2align 3')
    for s in range(12):
        tags=[f'H{s}',f'R{s}']
        if s==8: tags.append('fl')
        g.wait(*tags,lgkm=(0 if s==8 else 5) if 5<=s<=8 else None)
        if s==8:
            if 'noC' not in o: w0(g,'L_F_a',lambda:spin2(g,'L_F_A',252,fload(252,253,'s15')),20)
            a('s_barrier\n.p2align 3')
        k=RK[s]
        for m in range(4):
            for j in range(5):
                d=16*j+4*m; c='0' if s==0 else f'v[{d}:{d+3}]'
                a(f'v_mfma_f32_16x16x32_bf16 v[{d}:{d+3}], v[{R(k,j)}:{R(k,j)+3}], v[{H(s,m)}:{H(s,m)+3}], {c}')
            if s+4<12:
                x=lH(s+4)
                if m==0: em(x[0])
                em(x[1+m])
        pst=[]
        if s==0: pst=lL(0,5)
        if s in(1,2,3): pst=lR(s,s+8)
        if s in(4,5,6): pst=lL(RK[s+2],s+2)
        if s==4: pst+=['s_mov_b32 exec_hi, 0',(fload(252,253,'s15'),'fl'),'s_mov_b64 exec, -1']
        if s==8:
            pst=['v_and_b32 v192, 15, v251','v_lshrrev_b32 v193, 4, v251','v_lshlrev_b32 v194, 3, v192','v_lshl_add_u32 v195, v193, 14, v194',
                  's_lshl_b32 s14, s68, 2','s_add_u32 s14, s14, s5','s_lshl_b32 s10, s14, 7',f's_add_u32 s11, s10, {GG}',f's_mul_i32 s72, s69, {20*16384}','s_add_u32 s72, s72, s10',f's_add_u32 s72, s72, {AT}']
            for j in range(5): pst+=[(f'buffer_load_dwordx2 v[{180+2*j}:{181+2*j}], v195, s[52:55], s72 offen sc1','A'),'s_add_u32 s72, s72, 65536']
            pst.append((f'buffer_load_dwordx2 v[190:191], v194, s[52:55], s11 offen sc1','A'))
        if s==9:
            for mu in range(1,4): pst+=[f's_xor_b32 s10, s5, {mu}','s_mul_i32 s10, s10, 15360',f'v_add_u32 v{195+mu}, s10, v244']
            pst+=['s_mul_i32 s10, s5, 15360','v_add_u32 v199, s10, v244','s_lshl_b32 s10, s5, 12','s_add_u32 s10, s10, 61440',
                   'v_mul_u32_u24 v200, 176, v192','v_lshl_add_u32 v200, v193, 3, v200','v_add_u32 v200, s10, v200','s_mov_b32 s11, 0x1999999a',
                   's_mul_i32 s14, s14, 20480','s_mul_i32 s72, s69, 160','s_add_u32 s14, s14, s72']
            for n in range(3):
                pst+=[f'v_add_u32 v207, {64*n}, v251','v_mul_hi_u32 v208, v207, s11','v_add_u32 v209, v207, v208',f'v_lshl_add_u32 v{201+n}, v209, 4, s10','v_mul_u32_u24 v208, 1120, v208',f'v_lshl_add_u32 v{204+n}, v207, 4, v208']
        for x in pst: em(x)
    g.stamp(5)
    for mu in range(1,4):
        for j in range(5): a(f'ds_write_b128 v{195+mu}, v[{16*j+4*mu}:{16*j+4*mu+3}] offset:{(mu-1)*5120+j*1024}')
    a('s_waitcnt lgkmcnt(0)\ns_barrier')
    for j in range(5):
        for k in range(3): a(f'ds_read_b128 v[{16*j+4*k+4}:{16*j+4*k+7}], v199 offset:{k*5120+j*1024}')
    g.wait('A')
    for j in range(5):
        t=80+4*j
        a(f'v_lshlrev_b32 v{t}, 16, v{180+2*j}\nv_and_b32 v{t+1}, 0xffff0000, v{180+2*j}\nv_lshlrev_b32 v{t+2}, 16, v{181+2*j}\nv_and_b32 v{t+3}, 0xffff0000, v{181+2*j}')
        for r in range(4): a(f'v_mul_f32 v{t+r}, v190, v{t+r}')
    for j in range(5):
        t=80+4*j; d=16*j
        a(f's_waitcnt lgkmcnt({12-3*j+j})')
        for r in range(4): a(f'v_add_f32 v{d+r}, v{d+r}, v{d+4+r}\nv_add_f32 v{d+8+r}, v{d+8+r}, v{d+12+r}')
        for r in range(4): a(f'v_add_f32 v{d+r}, v{d+r}, v{d+8+r}')
        for r in range(4): a(f'v_fmac_f32 v{t+r}, v191, v{d+r}')
        a(f'v_cvt_pk_bf16_f32 v{t}, v{t}, v{t+1}\nv_cvt_pk_bf16_f32 v{t+1}, v{t+2}, v{t+3}\nds_write_b64 v200, v[{t}:{t+1}] offset:{32*j}')
    for n in range(3): a(f'ds_read_b128 v[{100+4*n}:{103+4*n}], v{201+n}')
    for n in range(3):
        a(f's_waitcnt lgkmcnt({2-n})')
        if n==2: a('s_mov_b32 exec_hi, 0')
        a(f'buffer_store_dwordx4 v[{100+4*n}:{103+4*n}], v{204+n}, s[76:79], s14 offen'+(' sc1' if 'osc' in o else ' nt' if 'ont' in o else ' sc0 sc1' if 'os2' in o else ' sc0 sc1 nt' if 'os3' in o else ''))
    g.stamp(6)
    if 'st' in o: a('s_waitcnt vmcnt(0)')
    g.dump('L_F_d')
    a('s_endpgm\nL_F_end:')
```

```python
from common import *
def role_C(g):
    a=g.a; g.vm=[]
    a('.p2align 3\nL_C:\ns_setprio 3')
    g.pref('C',3,255)
    a('s_mul_i32 s10, s3, 20\ns_add_u32 s10, s10, s4\ns_sub_u32 s10, s10, 12')
    a('s_lshl_b32 s11, s10, 2\ns_add_u32 s11, s11, s5')
    a('s_mul_i32 s12, s11, 384\nv_lshl_add_u32 v2, v1, 2, s12\nv_lshl_add_u32 v3, v1, 1, s12')
    a('s_and_b32 s13, s11, -2\ns_lshl_b32 s13, s13, 1')
    a('s_waitcnt lgkmcnt(0)')
    for k in range(6): g.v(f'global_load_dword v{10+k}, v2, s[{18+2*k}:{19+2*k}]','p')
    a('s_load_dword s14, s[30:31], s13\ns_load_dword s15, s[32:33], s13')
    for k in range(6): g.v(f'global_load_ushort v{16+k}, v3, s[{18+2*k}:{19+2*k}] offset:256','q')
    if 'pfw' in g.opt:
        a('s_bitcmp1_b32 s11, 0\ns_cselect_b32 s60, s38, s36\ns_cselect_b32 s61, s39, s37\ns_mov_b32 s62, 1966080\ns_mov_b32 s63, 0x20000')
        a('s_lshr_b32 s64, s11, 1\ns_mul_i32 s64, s64, 6144\nv_min_u32 v253, 47, v1\nv_lshlrev_b32 v253, 7, v253')
        if 'pfl' not in g.opt: g.v('buffer_load_dword v254, v253, s[60:63], s64 offen','pw')
    g.srd(52,48,0x1000000); g.srd(56,46,256)
    a('s_setprio '+('2' if 'cp2' in g.opt else '0'))
    a('s_mul_i32 s12, s5, 20480')
    a('v_mul_u32_u24 v40, 144, v1\nv_add_u32 v40, s12, v40')
    a('v_and_b32 v4, 31, v1\nv_lshrrev_b32 v5, 5, v1\nv_and_b32 v6, 12, v1\nv_add_u32 v6, v6, v5\nv_mul_u32_u24 v41, 144, v6\nv_and_b32 v6, 16, v1\nv_lshl_add_u32 v41, v6, 1, v41\nv_and_b32 v6, 3, v1\nv_lshl_add_u32 v41, v6, 3, v41\nv_add_u32 v41, s12, v41')
    for r in range(16): a(f'v_mov_b32 v{160+r}, 0')
    a('s_mul_i32 s69, s5, 20512\ns_add_u32 s69, s69, 9216\nv_lshl_add_u32 v48, v1, 4, s69\nds_write_b128 v48, v[160:163] offset:9216\nds_write_b128 v48, v[160:163] offset:9776')
    a('v_lshlrev_b32 v42, 9, v5\nv_lshl_add_u32 v42, v4, 4, v42\nv_add_u32 v42, s12, v42')
    a('v_mul_u32_u24 v7, 20512, v6\nv_lshrrev_b32 v6, 4, v0\nv_mul_u32_u24 v6, 144, v6\nv_bfe_u32 v9, v0, 2, 2\nv_lshlrev_b32 v8, 4, v9\nv_cmp_eq_u32 vcc, 0, v9\nv_add3_u32 v7, v7, v6, v8\nv_mov_b32 v8, 80')
    a('v_cndmask_b32 v8, v8, 0, vcc\nv_add_u32 v8, v8, v7')
    a(f's_lshl_b32 s50, s10, 14\ns_add_u32 s51, s50, {UT}\nv_lshlrev_b32 v9, 4, v0')
    a('s_waitcnt lgkmcnt(0)')
    a('s_and_b32 s13, s11, 1\ns_lshl_b32 s13, s13, 4\ns_lshr_b32 s14, s14, s13\ns_lshl_b32 s14, s14, 16\ns_lshr_b32 s15, s15, s13\ns_lshl_b32 s15, s15, 16')
    a('v_mov_b32 v44, 0x3fb8aa3b\nv_mul_f32 v44, s14, v44\nv_exp_f32 v44, v44\nv_cmp_eq_u32 vcc, 0, v1\nv_mov_b32 v43, s15\nv_cvt_pk_bf16_f32 v44, v44, v44\nv_cndmask_b32 v43, 0, v43, vcc\nv_lshlrev_b32 v44, 16, v44')
    a('v_readfirstlane_b32 s14, v44')
    g.wait('p')
    if 'pfl' in g.opt: g.v('buffer_load_dword v254, v253, s[60:63], s64 offen','pw')
    for k in range(6): a(f'v_lshlrev_b32 v{22+k}, 16, v{10+k}\nv_and_b32 v{28+k}, 0xffff0000, v{10+k}')
    g.wait('q')
    for k in range(6): a(f'v_lshlrev_b32 v{34+k}, 16, v{16+k}')
    a(f's_lshl_b32 s68, s3, 8\ns_add_u32 s68, s68, {FT}\nv_lshlrev_b32 v193, 2, v1')
    g.stamp(1)
    Z={1:44,8:47,256:50,2:53,4:56,16:80}
    def cm(d,s,z,conj=False,si=None):
        si=s+1 if si is None else si
        zi,nzi=(z+2,z+1) if conj else (z+1,z+2)
        return [f'v_mul_f32 v{d}, v{s}, v{z}',f'v_mul_f32 v{d+1}, v{si}, v{z}',f'v_fmac_f32 v{d}, v{si}, v{nzi}',f'v_fmac_f32 v{d+1}, v{s}, v{zi}']
    def il(x,y): return [t for p in zip(x,y) for t in p]
    setup=("""v_mul_f32 v22, s14, v22\nv_mul_f32 v23, s14, v23\nv_mul_f32 v24, s14, v24\nv_mul_f32 v25, s14, v25
v_mul_f32 v22, s70, v22\nv_mul_f32 v23, 0.15915494, v23
v_mul_f32 v59, s71, v22\nv_mul_f32 v61, s71, v23\nv_mul_f32 v60, s72, v22\nv_mul_f32 v62, s72, v23
v_exp_f32 v59, v59\nv_fract_f32 v61, v61\nv_exp_f32 v22, v22\nv_fract_f32 v23, v23\nv_exp_f32 v60, v60\nv_fract_f32 v62, v62
v_cos_f32 v47, v61\nv_mul_f32 v64, v26, v24\nv_sin_f32 v48, v61\nv_mul_f32 v65, v26, v25
v_cos_f32 v44, v23\nv_mul_f32 v63, v27, v25\nv_sin_f32 v45, v23\nv_fmac_f32 v65, v27, v24
v_cos_f32 v50, v62\nv_mul_f32 v47, v59, v47\nv_sin_f32 v51, v62\nv_mul_f32 v48, v59, v48
v_mul_f32 v44, v22, v44\nv_mul_f32 v45, v22, v45\nv_mul_f32 v50, v60, v50\nv_mul_f32 v51, v60, v51
v_sub_f32 v49, 0, v48\nv_sub_f32 v46, 0, v45\nv_sub_f32 v52, 0, v51\nv_sub_f32 v64, v64, v63""").split('\n')
    setup+=il(cm(80,47,47),cm(53,44,44))+['v_sub_f32 v82, 0, v81','v_sub_f32 v55, 0, v54']
    setup+=il(cm(56,53,53),[f'v_mov_b32 v{22+k}, v{28+k}' for k in range(4)])+['v_mov_b32 v26, v32','v_mov_b32 v27, v33','v_sub_f32 v58, 0, v57']+[f'v_mov_b32 v{28+k}, v{34+k}' for k in range(6)]
    a('s_mov_b32 s70, 0x3fb8aa3b\ns_mov_b32 s71, 0x41000000\ns_mov_b32 s72, 0x43800000')
    for t in setup: a(t)
    dsw=lambda q,off:[] if 'nodsw' in g.opt else [f'ds_write_b128 v40, v[{q}:{q+3}] offset:{off}']
    def trs(base): return [f'ds_read_b64_tr_b16 v[{base+4*s+2*e}:{base+4*s+2*e+1}], v41 offset:{(16*(s>>1)+2*(s&1))*144+64*e}' for s in range(8) for e in range(2)]
    a('s_mov_b32 s13, 0\n.p2align 3\nL_C_k:')
    W={0:('1.0','0'),1:('v47','v49'),2:('v80','v82')}
    for p in range(16):
        x=[]
        for b in (2*p,2*p+1):
            if b not in W:
                d=66+4*(b&1)+2*(p&1); sr,si=W[b-2]
                x.append(cm(d,int(sr[1:]),80,True,int(si[1:]))); W[b]=(f'v{d}',f'v{d+1}')
        for t in (il(*x) if len(x)==2 else x[0] if x else []): a(t)
        q=196+8*((p>>2)&1)
        for e in range(2): a(f'v_cvt_pk_bf16_f32 v{q+4*e+(p&3)}, {W[2*p][e]}, {W[2*p+1][e]}')
        if p&3==3:
            for e in range(2):
                for t in dsw(q+4*e,64*e+16*(p>>2)): a(t)
    for t in trs(128): a(t)
    a('s_cmp_lg_u32 s13, 2\ns_cbranch_scc1 L_C_q')
    w0(g,'L_C_q',lambda:(a('s_waitcnt vmcnt(0)'),spin2(g,'L_C_I',194,iload(194)),a('s_mov_b64 exec, -1\n'+fload(192,193,'s68'))))
    a('.p2align 3')
    def key(hh,r):
        if r<=8: return (hh,r if hh==0 else [0,0,2,4,4,4,6,8,8][r])
        if r<=11: return (2+hh,4*(r-9))
        if r<=13: return (4+hh,8*(r-12))
        return (6+hh,8*(r-14))
    c1=[((0,o),(0,o-1),1) for o in range(1,9)]+[((2,4),(2,0),4),((2,8),(2,0),8),((4,8),(4,0),8),((5,8),(5,0),8),((6,8),(6,0),8),((7,8),(7,0),8)]
    c2=[((1,0),(0,0),256)]+[((1,o),(1,o-2),2) for o in (2,4,6,8)]+[((2,0),(1,0),256),((3,0),(2,0),256),((3,4),(3,0),4),((3,8),(3,0),8)]+[((b,0),(b-1,0),256) for b in range(4,8)]
    cv=[(hh,r) for r in range(0,16,2) for hh in range(2)]
    reg={(0,0):64}; pool=list(range(96,128,2)); done=set(); todo=c1+c2
    for i in range(14):
        x=[]
        for ch in (c1,c2):
            if i<len(ch):
                k,sk,z=ch[i]; reg[k]=pool.pop(0); x.append(cm(reg[k],reg[sk],Z[z])); todo.remove(ch[i])
        for t in (il(*x) if len(x)==2 else x[0]): a(t)
        for (hh,r) in list(cv):
            k0,k1=key(hh,r),key(hh,r+1)
            if k0 in reg and k1 in reg:
                o=r>>2
                for e in range(2): a(f'v_cvt_pk_bf16_f32 v{212+8*o+4*e+2*hh+((r>>1)&1)}, v{reg[k0]+e}, v{reg[k1]+e}')
                cv.remove((hh,r))
                if not any((rr>>2)==o for _,rr in cv):
                    for e in range(2):
                        for t in dsw(212+8*o+4*e,64*e+16*o): a(t)
        live={sk for _,sk,_ in todo}|{key(hh,r+d) for hh,r in cv for d in (0,1)}
        for k in list(reg):
            if k not in live and k not in done:
                done.add(k)
                if reg[k]!=64: pool.append(reg[k])
    assert not cv
    if 'nokp' not in g.opt: a('s_setprio 2')
    for t in trs(96): a(t)
    a('s_add_u32 s13, s13, 1\ns_cmp_lg_u32 s13, 1\ns_cbranch_scc1 L_C_i')
    w0(g,'L_C_i',lambda:a(iload(194)))
    a('s_cmp_lg_u32 s13, 3\ns_cbranch_scc1 L_C_k0')
    w0(g,'L_C_p',lambda:(a('s_waitcnt vmcnt(0)'),(None if 'cs' in g.opt else spin2(g,'L_C_T',192,fload(192,193,'s68')))),64)
    a('s_barrier')
    if 'cs' not in g.opt: g.stamp(2)
    for n in range(4):
        a(f'buffer_load_dwordx4 v[{176+4*n}:{179+4*n}], v9, s[52:55], s51 offen sc1\ns_add_u32 s51, s51, 4096')
    mf=lambda s:f's_waitcnt lgkmcnt({14-2*s})\nv_mfma_f32_32x32x16_bf16 v[160:175], v[{96+4*s}:{99+4*s}], v[{128+4*s}:{131+4*s}], v[160:175]'
    for s in range(8): a(mf(s))
    a('s_branch L_C_x\n.p2align 3\nL_C_k0:')
    st=list(setup)
    for s in range(8):
        for _ in range(16 if s==0 else 7):
            if st: a(st.pop(0))
        a(mf(s))
    for t in st: a(t)
    if 'cp2' not in g.opt: a('s_setprio 0')
    if 'cs' in g.opt: a('s_mov_b32 s84, s86\ns_memrealtime s[86:87]\ns_waitcnt lgkmcnt(0)')
    a('s_branch L_C_k\nL_C_x:')
    if 'cs' in g.opt: g.stamp(4)
    if 'cs' not in g.opt: g.stamp(3)
    a('v_mov_b32 v44, 0\nv_lshl_add_u32 v40, v1, 2, s12\nds_write_b32 v40, v44\nds_write_b32 v40, v44 offset:4224')
    a('v_and_b32 v10, 1, v1\nv_cmp_eq_u32 vcc, 0, v10\nv_bfe_u32 v11, v1, 1, 3\nv_lshrrev_b32 v12, 4, v1')
    a('v_mov_b32 v13, 4240\nv_cndmask_b32 v13, 8, v13, vcc\nv_add_u32 v14, v11, v12\nv_lshl_add_u32 v2, v14, 3, v13\nv_add_u32 v2, s12, v2')
    a(f'v_mov_b32 v13, 640\nv_cndmask_b32 v13, 0, v13, vcc\nv_sub_u32 v14, 7, v11\nv_mul_u32_u24 v14, 144, v14\nv_lshl_add_u32 v14, v12, 3, v14\nv_add3_u32 v4, v13, v14, s69')
    a('v_add_f32 v160, v160, v43')
    P=lambda r:f'v{160+r}'
    a('v_cndmask_b32 v15, v173, v172, vcc\nv_cndmask_b32 v16, v175, v174, vcc')
    taps=[[P(r) for r in range(9)],[P(9)]*3+[P(10)]*3+[P(11)]*3,[P(12)]*4+['v15']+[P(13)]*4,[P(14)]*4+['v16']+[P(15)]*4]
    for k,t in enumerate(taps):
        o=50+10*(k&1)
        for q in range(4): a(f'v_cvt_pk_bf16_f32 v{o+q}, {t[2*q]}, {t[2*q+1]}')
        a(f'ds_write_b128 v42, v[{o}:{o+3}] offset:{64+1024*k}')
        for q in range(4): a(f'v_cvt_pk_bf16_f32 v{o+5+q}, {t[2*q+1]}, {t[2*q+2]}')
        a(f'ds_write_b32 v42, v{o+5} offset:{4224+76+1024*k}\nds_write_b96 v42, v[{o+6}:{o+8}] offset:{4224+80+1024*k}')
    a(f'v_cvt_pk_bf16_f32 v17, 0, v160\ns_mov_b64 exec, 1\nds_write_b32 v42, v17 offset:{4224+72}\ns_mov_b64 exec, -1')
    for n in range(4):
        d=176+4*n; t=20+4*n
        a(f's_waitcnt vmcnt({3-n})')
        a(f'ds_write_b128 v7, v[{d}:{d+3}] offset:{9216+2304*n}\nv_mov_b32 v{t}, v{d+1}\nv_mov_b32 v{t+1}, v{d+2}\nv_mov_b32 v{t+2}, v{d+3}')
        a(f'ds_write_b32 v8, v{d} offset:{9216+640-84+2304*n}\nds_write_b96 v7, v[{t}:{t+2}] offset:{9216+640+2304*n}')
    a('s_waitcnt lgkmcnt(0)\ns_barrier')
    if 'cs' not in g.opt: g.stamp(4)
    if 'cm0' in g.opt: a('s_setprio 0')
    K=lambda b,x:64+64*(b&1)+4*x
    U=lambda b,x:96+64*(b&1)+4*x
    if 'rd2' in g.opt:
        def rdK(b,x): o=64*(x&3)+8*b; return [f'ds_read2_b64 v[{K(b,x)}:{K(b,x)+3}], v{2+(x>>2)} offset0:{o} offset1:{o+4}']
        def rdU(b,x): s=7-x; o=10*b+80*(s%3); return [f'ds_read2_b64 v[{U(b,x)}:{U(b,x)+3}], v{4+s//3} offset0:{o} offset1:{o+4}']
    else:
        def rdK(b,x): return [f'ds_read_b64 v[{K(b,x)+2*e}:{K(b,x)+2*e+1}], v2 offset:{512*x+64*b+32*e}' for e in range(2)]
        def rdU(b,x): return [f'ds_read_b64 v[{U(b,x)+2*e}:{U(b,x)+2*e+1}], v4 offset:{144*b+1152*(7-x)+32*e}' for e in range(2)]
    def rds(b): return sum([rdK(b,0)]+[rdU(b,x) for x in range(8)]+[rdK(b,x) for x in range(1,8)],[])
    a('.p2align 3')
    for k,t in enumerate(rds(0)):
        a(t)
        if k%8==7 and k>8: a('s_waitcnt lgkmcnt(6)\ns_nop 0')
    for b in range(8):
        nx=rds(b+1) if b<7 else []
        a('s_waitcnt lgkmcnt(0)\ns_nop 0')
        n=0
        for x in range(8):
            for t in range(x,8):
                c='0' if (b==0 and x==0) else f'v[{192+4*t}:{195+4*t}]'
                a(f'v_mfma_f32_16x16x32_bf16 v[{192+4*t}:{195+4*t}], v[{K(b,x)}:{K(b,x)+3}], v[{U(b,t-x)}:{U(b,t-x)+3}], {c}')
                n+=1
                if (n%2==1 or 'rd2' not in g.opt) and nx: a(nx.pop(0))
    g.stamp(5)
    a('s_setprio 3')
    a('s_mul_i32 s13, s5, 20544\nv_lshlrev_b32 v13, 5, v11\nv_lshl_add_u32 v13, v12, 3, v13\nv_lshl_add_u32 v13, v10, 2, v13\nv_add_u32 v13, s13, v13')
    a('v_bfe_u32 v14, v1, 2, 2\nv_mul_u32_u24 v14, 20544, v14\nv_lshl_add_u32 v14, v12, 5, v14\nv_and_b32 v15, 3, v1\nv_lshl_add_u32 v14, v15, 3, v14\ns_lshl_b32 s13, s5, 9\nv_add_u32 v14, s13, v14')
    a('v_and_b32 v15, 60, v1\nv_bfe_u32 v16, v1, 1, 1\nv_lshl_add_u32 v16, v10, 1, v16\nv_add_u32 v15, v15, v16\nv_lshlrev_b32 v15, 4, v15')
    a(f's_lshl_b32 s13, s5, 12\ns_add_u32 s50, s50, s13\ns_add_u32 s50, s50, {AT}')
    for t in range(8):
        d=192+4*t; o=20+2*t
        a(f'v_cvt_pk_bf16_f32 v{o}, v{d}, v{d+2}\nv_cvt_pk_bf16_f32 v{o+1}, v{d+1}, v{d+3}\nds_write2st64_b32 v13, v{o}, v{o+1} offset0:{t} offset1:{t+8}')
    a('s_waitcnt lgkmcnt(0)\ns_barrier')
    for n in range(4): a(f'ds_read_b64_tr_b16 v[{40+4*n}:{41+4*n}], v14 offset:{128*n}\nds_read_b64_tr_b16 v[{42+4*n}:{43+4*n}], v14 offset:{2048+128*n}')
    for n in range(4): a(f's_waitcnt lgkmcnt({6-2*n})\nbuffer_store_dwordx4 v[{40+4*n}:{43+4*n}], v15, s[52:55], s50 offen offset:{1024*n} sc1')
    a(f's_lshl_b32 s13, s3, 5\ns_add_u32 s13, s13, s4\ns_lshl_b32 s13, s13, 2\ns_add_u32 s13, s13, {FA-48}\nv_lshlrev_b32 v3, 10, v1')
    g.stamp(6)
    g.wait0(); a('s_barrier')
    w0(g,'L_C_s',lambda:post(g,2,3,'s13'),8)
    g.dump('L_C_d')
    a('s_endpgm\nL_C_end:')
```

```python
from common import *
def role_T(g):
    a=g.a; g.vm=[]
    a('.p2align 3\nL_T:\ns_setprio 3')
    g.pref('T',3,255)
    a('s_lshl_b32 s10, s3, 3\ns_add_u32 s10, s10, s4')
    a('v_lshrrev_b32 v2, 4, v1\nv_and_b32 v3, 15, v1\nv_lshlrev_b32 v4, 4, v3')
    a('v_mul_u32_u24 v5, 1280, v2\nv_add_u32 v5, v5, v4')
    a('s_lshl_b32 s11, s10, 2\ns_add_u32 s11, s11, s5\ns_mul_i32 s12, s11, 10240\ns_add_u32 s13, s12, 5120')
    a('s_waitcnt lgkmcnt(0)')
    g.srd(60,16,2621440); g.srd(64,42,1280); g.srd(52,48,0x1000000); g.srd(56,46,256)
    for m in range(2):
        for i in range(5): g.v(f'buffer_load_dwordx4 v[{10+m*20+i*4}:{13+m*20+i*4}], v5, s[60:63], s{12+m} offen offset:{i*256}',f'x{m}{i}')
    for i in range(5): g.v(f'buffer_load_dwordx4 v[{50+i*4}:{53+i*4}], v4, s[64:67], 0 offen offset:{i*256}','gw')
    a(f's_mul_i32 s14, s5, {8*1312+128}\nv_mul_u32_u24 v6, 1312, v2\nv_add3_u32 v6, v6, v4, s14')
    a(f'v_sub_u32 v7, 3, v2\nv_mul_u32_u24 v7, {8*1312+128}, v7\nv_bfe_u32 v8, v1, 2, 2\nv_sub_u32 v8, 3, v8\nv_mul_u32_u24 v8, 1312, v8')
    a('v_and_b32 v9, 3, v1\nv_lshlrev_b32 v70, 3, v9\ns_mul_i32 s14, s5, 320\nv_add3_u32 v7, v7, v8, v70\nv_add_u32 v7, s14, v7')
    a('v_bfe_u32 v8, v1, 2, 2\nv_lshlrev_b32 v8, 14, v8\nv_lshlrev_b32 v70, 6, v2\nv_lshlrev_b32 v9, 4, v9\nv_add3_u32 v8, v8, v70, v9')
    a(f's_mul_i32 s14, s5, {40*16384}\ns_lshl_b32 s15, s10, 8\ns_sub_u32 s14, s14, s15\ns_add_u32 s14, s14, {UT+252*64}')
    for m in range(2):
        for i in range(5):
            g.wait(f'x{m}{i}')
            a(f'ds_write_b128 v6, v[{10+m*20+i*4}:{13+m*20+i*4}] offset:{m*5248+i*256}')
    a('s_waitcnt lgkmcnt(0)\ns_barrier')
    for q in range(10):
        a(f'ds_read_b64_tr_b16 v[{72+q*4}:{73+q*4}], v7 offset:{5248+q*32}\nds_read_b64_tr_b16 v[{74+q*4}:{75+q*4}], v7 offset:{q*32}')
        if q>=3:
            a('s_waitcnt lgkmcnt(6)')
            g.v(f'buffer_store_dwordx4 v[{72+(q-3)*4}:{75+(q-3)*4}], v8, s[52:55], s14 offen sc1'); a('s_add_u32 s14, s14, 65536')
    for q in range(7,10):
        a(f's_waitcnt lgkmcnt({(9-q)*2})')
        g.v(f'buffer_store_dwordx4 v[{72+q*4}:{75+q*4}], v8, s[52:55], s14 offen sc1'); a('s_add_u32 s14, s14, 65536')
    g.wait('gw')
    a('v_mov_b32 v112, 0\nv_mov_b32 v113, 0\ns_mov_b32 s15, 0xffff0000')
    for i in range(20):
        a(f'v_lshlrev_b32 v121, 16, v{50+i}\nv_and_b32 v122, s15, v{50+i}')
        for m in range(2):
            x=10+m*20+i
            a(f'v_lshlrev_b32 v123, 16, v{x}\nv_and_b32 v{x}, s15, v{x}\nv_fmac_f32 v{112+m}, v123, v121\nv_fmac_f32 v{112+m}, v{x}, v122')
    for sh in (8,4,2,1):
        for m in range(2): a(f'v_add_f32_dpp v{112+m}, v{112+m}, v{112+m} row_ror:{sh} row_mask:0xf bank_mask:0xf')
    a('v_cvt_pk_bf16_f32 v114, v112, v113\nv_lshlrev_b32 v112, 16, v114\nv_and_b32 v113, 0xffff0000, v114')
    for m in range(2): a(f'v_mul_f32 v{112+m}, 0xbfb8aa3b, v{112+m}')
    for m in range(2): a(f'v_exp_f32 v{112+m}, v{112+m}')
    for m in range(2): a(f'v_add_f32 v{112+m}, 1.0, v{112+m}')
    for m in range(2): a(f'v_rcp_f32 v{112+m}, v{112+m}')
    a('v_cvt_pk_bf16_f32 v114, v112, v113\nv_lshlrev_b32 v116, 16, v114\nv_and_b32 v118, 0xffff0000, v114')
    a('v_sub_f32 v112, 1.0, v116\nv_sub_f32 v113, 1.0, v118\nv_cvt_pk_bf16_f32 v114, v112, v113\nv_lshlrev_b32 v117, 16, v114\nv_and_b32 v119, 0xffff0000, v114')
    a(f's_lshl_b32 s11, s11, 6\ns_add_u32 s11, s11, {GG}\nv_lshlrev_b32 v2, 3, v2')
    a('s_mov_b32 exec_lo, 0x10001\ns_mov_b32 exec_hi, 0x10001')
    a('buffer_store_dwordx2 v[116:117], v2, s[52:55], s11 offen sc1\nbuffer_store_dwordx2 v[118:119], v2, s[52:55], s11 offen offset:32 sc1\ns_mov_b64 exec, -1')
    w0(g,'L_T_i',lambda:a(iload(120)))
    a(f's_lshl_b32 s10, s10, 2\ns_add_u32 s10, s10, {FT}\nv_lshlrev_b32 v3, 8, v1')
    g.stamp(1)
    g.wait0(); a('s_barrier')
    w0(g,'L_T_s',lambda:(spin2(g,'L_T_I',120,iload(120)),a('s_mov_b64 exec, 0xff'),post(g,2,3,'s10')))
    g.dump('L_T_d')
    a('s_endpgm\nL_T_end:')
def role_W(g):
    a=g.a; g.vm=[]
    a('.p2align 3\nL_W:\ns_setprio 2')
    g.pref('W',3,255)
    a('s_lshl_b32 s10, s3, 2\ns_add_u32 s10, s10, s4\ns_sub_u32 s10, s10, 8')
    a('v_lshrrev_b32 v2, 4, v1\nv_and_b32 v3, 15, v1\nv_lshlrev_b32 v4, 4, v3')
    a('v_mul_u32_u24 v5, 1280, v2\nv_add_u32 v5, v5, v4')
    a('s_lshl_b32 s11, s10, 2\ns_add_u32 s11, s11, s5\ns_mul_i32 s12, s11, 15360\ns_add_u32 s13, s12, 5120\ns_add_u32 s14, s12, 10240')
    a('s_waitcnt lgkmcnt(0)')
    g.srd(60,40,1966080); g.srd(52,48,0x1000000); g.srd(56,46,256)
    a(f's_cmp_lg_u32 s10, 0\ns_cbranch_scc1 L_W_y\nv_mov_b32 v72, 0\nv_mov_b32 v73, 0\nv_mov_b32 v74, 0\nv_mov_b32 v75, 0\nv_lshlrev_b32 v76, 4, v0\ns_mov_b32 s15, {FL}\n'+iload(78))
    for i in range(4): a('buffer_store_dwordx4 v[72:75], v76, s[52:55], s15 offen sc1\ns_add_u32 s15, s15, 4096')
    if 'wl' in g.opt:
        a('s_branch L_W_w\nL_W_y:')
        w0(g,'L_W_v',lambda:(a('v_mov_b32 v140, 0'),spin2(g,'L_W_J',140,iload(140))))
        a('s_barrier\nL_W_w:')
    else: a('L_W_y:')
    for m in range(3):
        for i in range(5):
            g.v(f'buffer_load_dwordx4 v[{10+m*20+i*4}:{13+m*20+i*4}], v5, s[60:63], s{12+m} offen offset:{i*256}',f'x{m}{i}')
            if 'wl2' in g.opt and m==0 and i==0:
                g.wait0()
                a('s_cmp_lg_u32 s10, 0\ns_cbranch_scc1 L_W_z\ns_barrier')
                w0(g,'L_W_z',lambda:a('v_mov_b32 v77, 1\nbuffer_store_dword v77, off, s[56:59], 0 sc1'))
    if 'wl2' not in g.opt:
        a('s_cmp_lg_u32 s10, 0\ns_cbranch_scc1 L_W_z\ns_waitcnt vmcnt(15)\ns_barrier')
        w0(g,'L_W_z',lambda:a('v_mov_b32 v77, 1\nbuffer_store_dword v77, off, s[56:59], 0 sc1\ns_waitcnt vmcnt(0)'))
    a(f's_mul_i32 s15, s5, {12*1312}\nv_mul_u32_u24 v6, 1312, v2\nv_add3_u32 v6, v6, v4, s15')
    a('v_bfe_u32 v7, v1, 2, 3\nv_mul_u32_u24 v7, 1312, v7\nv_lshrrev_b32 v8, 5, v1\nv_mul_u32_u24 v9, 640, v8\nv_and_b32 v70, 3, v1\nv_lshlrev_b32 v70, 3, v70')
    a('s_mul_i32 s15, s5, 160\nv_add3_u32 v7, v7, v9, v70\nv_add_u32 v7, s15, v7')
    a('v_mul_u32_u24 v8, 983040, v8\nv_and_b32 v9, 31, v1\nv_lshlrev_b32 v9, 4, v9\nv_add_u32 v8, v8, v9\nv_add_u32 v9, 4096, v8')
    for p in range(3):
        a(f's_mul_i32 s{12+p}, s10, 3\ns_add_u32 s{12+p}, s{12+p}, {p}\ns_and_b32 s15, s{12+p}, 1\ns_lshl_b32 s15, s15, 9\ns_lshr_b32 s{12+p}, s{12+p}, 1\ns_mul_i32 s{12+p}, s{12+p}, 5120\ns_add_u32 s{12+p}, s{12+p}, s15')
        a(f's_mul_i32 s15, s5, 245760\ns_add_u32 s15, s15, {WDF}\ns_add_u32 s{12+p}, s{12+p}, s15')
    for m in range(3):
        for i in range(5):
            g.wait(f'x{m}{i}')
            a(f'ds_write_b128 v6, v[{10+m*20+i*4}:{13+m*20+i*4}] offset:{m*5248+i*256}')
    a('s_waitcnt lgkmcnt(0)\ns_barrier')
    def st(n):
        p,j=divmod(n,5)
        g.v(f'buffer_store_dwordx4 v[{72+n*4}:{75+n*4}], v{9 if j==4 else 8}, s[52:55], s{12+p} offen offset:{(j&3)*1024} sc1')
    for n in range(15):
        p,j=divmod(n,5)
        for e in range(2): a(f'ds_read_b64_tr_b16 v[{72+n*4+2*e}:{73+n*4+2*e}], v7 offset:{(16*p+8*e)*1312+j*32}')
        if n>=3: a('s_waitcnt lgkmcnt(6)'); st(n-3)
    for n in range(12,15): a(f's_waitcnt lgkmcnt({(14-n)*2})'); st(n)
    w0(g,'L_W_i',lambda:a(iload(140)))
    a(f's_lshl_b32 s10, s10, 2\ns_add_u32 s10, s10, {FW}\nv_lshlrev_b32 v3, 7, v1')
    g.stamp(1)
    g.wait0(); a('s_barrier')
    w0(g,'L_W_s',lambda:(spin2(g,'L_W_I',140,iload(140)),a('s_mov_b64 exec, 0xff'),post(g,2,3,'s10')))
    g.dump('L_W_d')
    a('s_endpgm\nL_W_end:')
```

```python
HF=0; WDF=0x600000; UT=0x800000; AT=0xB00000; GG=0xE00000; ST=0xF00000
NAME='gated_mix__ssm_conv_s4__glu_gated_bilinear__prompt_kernel'
SPIN=200000
class Gen:
    def __init__(s,opt): s.L=[]; s.vm=[]; s.opt=opt; s.nst=0
    def a(s,t):
        for x in t.split('\n'):
            if x.strip(): s.L.append(x.strip())
    def v(s,t,tag=None):
        s.a(t); s.vm.append(tag)
    def vmn(s,*tags):
        idx=[i for i,t in enumerate(s.vm) if t in tags]
        if not idx: return None
        n=len(s.vm)-1-max(idx); s.vm=s.vm[max(idx)+1:]
        assert n<=63
        return n
    def wait(s,*tags,lgkm=None):
        n=s.vmn(*tags); p=[]
        if n is not None: p.append(f'vmcnt({n})')
        if lgkm is not None: p.append(f'lgkmcnt({lgkm})')
        if p: s.a('s_waitcnt '+' '.join(p))
    def wait0(s): s.vm=[]; s.a('s_waitcnt vmcnt(0)')
    def srd(s,d,p,n):
        s.a(f's_mov_b32 s{d}, s{p}\ns_mov_b32 s{d+1}, s{p+1}\ns_mov_b32 s{d+2}, {n}\ns_mov_b32 s{d+3}, 0x20000')
    def pstamp(s,k):
        if 'ps' in s.opt: s.a(f's_memrealtime s[{80+2*k}:{81+2*k}]')
    def stamp(s,k):
        if 'ps' in s.opt and k in (2,3,4): return
        if 'st' in s.opt: s.a(f's_memrealtime s[{80+2*k}:{81+2*k}]')
    def dump(s,lab):
        if 'st' not in s.opt: return
        s.a(f's_memrealtime s[94:95]\ns_waitcnt lgkmcnt(0)\ns_cmp_lg_u32 s5, 0\ns_cbranch_scc1 {lab}\ns_mov_b64 exec, 1')
        s.a(f's_lshl_b32 s6, s2, 5\ns_add_u32 s6, s6, {ST}\nv_mov_b32 v1, s6')
        for k in range(8): s.a(f'v_mov_b32 v2, s{80+2*k}\nbuffer_store_dword v2, v1, s[52:55], 0 offen offset:{4*k}')
        s.a(f'{lab}:')
        for o in s.opt:
            if o.startswith('enc') and o[3]==lab[2]:
                k=int(o[4:]); s.a(f's_sub_u32 s9, s{80+2*k}, s80\ns_min_u32 s9, s9, 6000\ns_add_u32 s9, s9, 4000\ns_mov_b32 s8, 0\n{lab}_e:\ns_memrealtime s[6:7]\ns_waitcnt lgkmcnt(0)\ns_sub_u32 s6, s6, s80\ns_add_u32 s8, s8, 1\ns_cmp_ge_u32 s8, 20000\ns_cbranch_scc1 {lab}_x\ns_cmp_lt_u32 s6, s9\ns_cbranch_scc1 {lab}_e\n{lab}_x:')
    def pref(s,tag,vt,vd):
        if 'nopf' in s.opt: s.a(f'L_{tag}_pc:'); return
        if 'pfd' in s.opt:
            k,j0={'F':(0,0),'C':(0,12),'T':(0,0),'W':(0,8)}[tag]
            s.a(f's_getpc_b64 s[6:7]\nL_{tag}_pc:\ns_sub_u32 s8, s4, {j0}\ns_lshl_b32 s8, s8, 2\ns_add_u32 s8, s8, s5\ns_lshl_b32 s8, s8, 7\ns_min_u32 s8, s8, L_{tag}_end-L_{tag}_pc-4\nv_mov_b32 v{vt}, s8')
            s.v(f'global_load_dword v{vd}, v{vt}, s[6:7]','pf'); return
        s.a(f's_getpc_b64 s[6:7]\nL_{tag}_pc:\nv_lshlrev_b32 v{vt}, 7, v0\nv_min_u32 v{vt}, L_{tag}_end-L_{tag}_pc-4, v{vt}')
        s.v(f'global_load_dword v{vd}, v{vt}, s[6:7]','pf')
    def signal(s,lab,soff,vt,imm=0):
        s.a(f's_cmp_lg_u32 s5, 0\ns_cbranch_scc1 {lab}\ns_mov_b64 exec, 1\nv_mov_b32 v{vt}, 1')
        s.a(f'buffer_atomic_add v{vt}, off, s[56:59], {soff} offset:{imm} sc1\ns_mov_b64 exec, -1\n{lab}:')
    def flagload(s,vt,soff,imm=0,tag='fl'):
        s.v(f'buffer_load_dword v{vt}, off, s[56:59], {soff} offset:{imm} sc1',tag)
    def spin(s,lab,vt,soff,cnt,imm=0):
        s.a(f'''s_mov_b32 s8, 0
{lab}_l:
v_readfirstlane_b32 s9, v{vt}
s_add_u32 s8, s8, 1
s_cmp_ge_u32 s9, {cnt}
s_cbranch_scc1 {lab}_d
s_cmp_ge_u32 s8, {SPIN}
s_cbranch_scc1 {lab}_d
{'s_sleep 16' if 'slp' in s.opt else ''}
buffer_load_dword v{vt}, off, s[56:59], {soff} offset:{imm} sc1
s_waitcnt vmcnt(0)
s_branch {lab}_l
{lab}_d:''')
def w0(g,lab,body,n=1):
    g.a(f's_cmp_lg_u32 s5, 0\ns_cbranch_scc1 {lab}\n'+(f's_bfm_b64 exec, {n}, 0' if n<64 else '')); body(); g.a(f's_mov_b64 exec, -1\n{lab}:')
F_T=8; F_W=136

FL=0xE10000; FH=FL; FA=FL+0x800; FT=FL+0x2800; FW=FL+0x3000; FP=FL+0x4000; FQ=FP+0x8000
def fload(vt,va,soff): return f'buffer_load_dword v{vt}, v{va}, s[52:55], {soff} offen sc1'
def iload(vt): return f'buffer_load_dword v{vt}, off, s[56:59], 0 sc1'
def spin2(g,lab,vt,ld):
    g.a(f"""s_mov_b32 s8, 0
{lab}_l:
v_cmp_eq_u32 vcc, 0, v{vt}
s_add_u32 s8, s8, 1
s_cbranch_vccz {lab}_d
s_cmp_ge_u32 s8, {SPIN}
s_cbranch_scc1 {lab}_d
{ld}
s_waitcnt vmcnt(0)
s_branch {lab}_l
{lab}_d:""")
def post(g,vt,va,soff): g.a(f'v_mov_b32 v{vt}, 1\nbuffer_store_dword v{vt}, v{va}, s[52:55], {soff} offen sc1')
```

```python
from common import *
def role_C(g):
    a=g.a; g.vm=[]
    a('.p2align 3\nL_C:\ns_setprio 3')
    g.pref('C',3,255)
    a('s_mul_i32 s10, s3, 20\ns_add_u32 s10, s10, s4\ns_sub_u32 s10, s10, 12')
    a('s_lshl_b32 s11, s10, 2\ns_add_u32 s11, s11, s5')
    a('s_mul_i32 s12, s11, 384\nv_lshl_add_u32 v2, v1, 2, s12\nv_lshl_add_u32 v3, v1, 1, s12')
    a('s_and_b32 s13, s11, -2\ns_lshl_b32 s13, s13, 1')
    g.pstamp(2); a('s_waitcnt lgkmcnt(0)'); g.pstamp(3)
    for k in range(6): g.v(f'global_load_dword v{10+k}, v2, s[{18+2*k}:{19+2*k}]','p')
    a('s_load_dword s14, s[30:31], s13\ns_load_dword s15, s[32:33], s13')
    for k in range(6): g.v(f'global_load_ushort v{16+k}, v3, s[{18+2*k}:{19+2*k}] offset:256','q')
    if 'pfw' in g.opt:
        a('s_bitcmp1_b32 s11, 0\ns_cselect_b32 s60, s38, s36\ns_cselect_b32 s61, s39, s37\ns_mov_b32 s62, 1966080\ns_mov_b32 s63, 0x20000')
        a('s_lshr_b32 s64, s11, 1\ns_mul_i32 s64, s64, 6144\nv_min_u32 v253, 47, v1\nv_lshlrev_b32 v253, 7, v253')
        if 'pfl' not in g.opt: g.v('buffer_load_dword v254, v253, s[60:63], s64 offen','pw')
    g.pstamp(4); g.srd(52,48,0x1000000); g.srd(56,46,256)
    a('s_setprio '+('2' if 'cp2' in g.opt else '0'))
    a('s_mul_i32 s12, s5, 20480')
    a('v_mul_u32_u24 v40, 144, v1\nv_add_u32 v40, s12, v40')
    a('v_and_b32 v4, 31, v1\nv_lshrrev_b32 v5, 5, v1\nv_and_b32 v6, 12, v1\nv_add_u32 v6, v6, v5\nv_mul_u32_u24 v41, 144, v6\nv_and_b32 v6, 16, v1\nv_lshl_add_u32 v41, v6, 1, v41\nv_and_b32 v6, 3, v1\nv_lshl_add_u32 v41, v6, 3, v41\nv_add_u32 v41, s12, v41')
    for r in range(16): a(f'v_mov_b32 v{160+r}, 0')
    a('s_mul_i32 s69, s5, 20512\ns_add_u32 s69, s69, 9216\nv_lshl_add_u32 v48, v1, 4, s69\nds_write_b128 v48, v[160:163] offset:9216\nds_write_b128 v48, v[160:163] offset:9776')
    a('v_lshlrev_b32 v42, 9, v5\nv_lshl_add_u32 v42, v4, 4, v42\nv_add_u32 v42, s12, v42')
    a('v_mul_u32_u24 v7, 20512, v6\nv_lshrrev_b32 v6, 4, v0\nv_mul_u32_u24 v6, 144, v6\nv_bfe_u32 v9, v0, 2, 2\nv_lshlrev_b32 v8, 4, v9\nv_cmp_eq_u32 vcc, 0, v9\nv_add3_u32 v7, v7, v6, v8\nv_mov_b32 v8, 80')
    a('v_cndmask_b32 v8, v8, 0, vcc\nv_add_u32 v8, v8, v7')
    a(f's_lshl_b32 s50, s10, 14\ns_add_u32 s51, s50, {UT}\nv_lshlrev_b32 v9, 4, v0')
    a('s_waitcnt lgkmcnt(0)')
    a('s_and_b32 s13, s11, 1\ns_lshl_b32 s13, s13, 4\ns_lshr_b32 s14, s14, s13\ns_lshl_b32 s14, s14, 16\ns_lshr_b32 s15, s15, s13\ns_lshl_b32 s15, s15, 16')
    a('v_mov_b32 v44, 0x3fb8aa3b\nv_mul_f32 v44, s14, v44\nv_exp_f32 v44, v44\nv_cmp_eq_u32 vcc, 0, v1\nv_mov_b32 v43, s15\nv_cvt_pk_bf16_f32 v44, v44, v44\nv_cndmask_b32 v43, 0, v43, vcc\nv_lshlrev_b32 v44, 16, v44')
    a('v_readfirstlane_b32 s14, v44')
    g.wait('p')
    if 'pfl' in g.opt: g.v('buffer_load_dword v254, v253, s[60:63], s64 offen','pw')
    for k in range(6): a(f'v_lshlrev_b32 v{22+k}, 16, v{10+k}\nv_and_b32 v{28+k}, 0xffff0000, v{10+k}')
    g.wait('q')
    for k in range(6): a(f'v_lshlrev_b32 v{34+k}, 16, v{16+k}')
    a(f's_lshl_b32 s68, s3, 8\ns_add_u32 s68, s68, {FT}\nv_lshlrev_b32 v193, 2, v1')
    g.stamp(1)
    Z={1:44,8:47,256:50,2:53,4:56,16:80}
    def cm(d,s,z,conj=False,si=None):
        si=s+1 if si is None else si
        zi,nzi=(z+2,z+1) if conj else (z+1,z+2)
        return [f'v_mul_f32 v{d}, v{s}, v{z}',f'v_mul_f32 v{d+1}, v{si}, v{z}',f'v_fmac_f32 v{d}, v{si}, v{nzi}',f'v_fmac_f32 v{d+1}, v{s}, v{zi}']
    def il(x,y): return [t for p in zip(x,y) for t in p]
    setup=("""v_mul_f32 v22, s14, v22\nv_mul_f32 v23, s14, v23\nv_mul_f32 v24, s14, v24\nv_mul_f32 v25, s14, v25
v_mul_f32 v22, s70, v22\nv_mul_f32 v23, 0.15915494, v23
v_mul_f32 v59, s71, v22\nv_mul_f32 v61, s71, v23\nv_mul_f32 v60, s72, v22\nv_mul_f32 v62, s72, v23
v_exp_f32 v59, v59\nv_fract_f32 v61, v61\nv_exp_f32 v22, v22\nv_fract_f32 v23, v23\nv_exp_f32 v60, v60\nv_fract_f32 v62, v62
v_cos_f32 v47, v61\nv_mul_f32 v64, v26, v24\nv_sin_f32 v48, v61\nv_mul_f32 v65, v26, v25
v_cos_f32 v44, v23\nv_mul_f32 v63, v27, v25\nv_sin_f32 v45, v23\nv_fmac_f32 v65, v27, v24
v_cos_f32 v50, v62\nv_mul_f32 v47, v59, v47\nv_sin_f32 v51, v62\nv_mul_f32 v48, v59, v48
v_mul_f32 v44, v22, v44\nv_mul_f32 v45, v22, v45\nv_mul_f32 v50, v60, v50\nv_mul_f32 v51, v60, v51
v_sub_f32 v49, 0, v48\nv_sub_f32 v46, 0, v45\nv_sub_f32 v52, 0, v51\nv_sub_f32 v64, v64, v63""").split('\n')
    setup+=il(cm(80,47,47),cm(53,44,44))+['v_sub_f32 v82, 0, v81','v_sub_f32 v55, 0, v54']
    setup+=il(cm(56,53,53),[f'v_mov_b32 v{22+k}, v{28+k}' for k in range(4)])+['v_mov_b32 v26, v32','v_mov_b32 v27, v33','v_sub_f32 v58, 0, v57']+[f'v_mov_b32 v{28+k}, v{34+k}' for k in range(6)]
    a('s_mov_b32 s70, 0x3fb8aa3b\ns_mov_b32 s71, 0x41000000\ns_mov_b32 s72, 0x43800000')
    for t in setup: a(t)
    dsw=lambda q,off:[] if 'nodsw' in g.opt else [f'ds_write_b128 v40, v[{q}:{q+3}] offset:{off}']
    def trs(base): return [f'ds_read_b64_tr_b16 v[{base+4*s+2*e}:{base+4*s+2*e+1}], v41 offset:{(16*(s>>1)+2*(s&1))*144+64*e}' for s in range(8) for e in range(2)]
    a('s_mov_b32 s13, 0\n.p2align 3\nL_C_k:')
    W={0:('1.0','0'),1:('v47','v49'),2:('v80','v82')}
    for p in range(16):
        x=[]
        for b in (2*p,2*p+1):
            if b not in W:
                d=66+4*(b&1)+2*(p&1); sr,si=W[b-2]
                x.append(cm(d,int(sr[1:]),80,True,int(si[1:]))); W[b]=(f'v{d}',f'v{d+1}')
        for t in (il(*x) if len(x)==2 else x[0] if x else []): a(t)
        q=196+8*((p>>2)&1)
        for e in range(2): a(f'v_cvt_pk_bf16_f32 v{q+4*e+(p&3)}, {W[2*p][e]}, {W[2*p+1][e]}')
        if p&3==3:
            for e in range(2):
                for t in dsw(q+4*e,64*e+16*(p>>2)): a(t)
    for t in trs(128): a(t)
    a('s_cmp_lg_u32 s13, 2\ns_cbranch_scc1 L_C_q')
    U2='ut2' in g.opt
    smpT=lambda:(a('s_waitcnt vmcnt(0)'),spin2(g,'L_C_I',194,iload(194)),a('s_mov_b64 exec, -1\n'+fload(192,193,'s68')))
    def chkT():
        w0(g,'L_C_p',lambda:(a('s_waitcnt vmcnt(0)'),(None if 'cs' in g.opt else spin2(g,'L_C_T',192,fload(192,193,'s68')))),64)
        if 'ce2' in g.opt and not U2: a('s_setprio 2')
        a('s_barrier')
        if 'cs' not in g.opt and not U2: g.stamp(2)
        for n in range(4):
            a(f'buffer_load_dwordx4 v[{176+4*n}:{179+4*n}], v9, s[52:55], s51 offen sc1\ns_add_u32 s51, s51, 4096')
    if U2: chkT(); a('L_C_q:')
    else: w0(g,'L_C_q',smpT)
    a('.p2align 3')
    def key(hh,r):
        if r<=8: return (hh,r if hh==0 else [0,0,2,4,4,4,6,8,8][r])
        if r<=11: return (2+hh,4*(r-9))
        if r<=13: return (4+hh,8*(r-12))
        return (6+hh,8*(r-14))
    c1=[((0,o),(0,o-1),1) for o in range(1,9)]+[((2,4),(2,0),4),((2,8),(2,0),8),((4,8),(4,0),8),((5,8),(5,0),8),((6,8),(6,0),8),((7,8),(7,0),8)]
    c2=[((1,0),(0,0),256)]+[((1,o),(1,o-2),2) for o in (2,4,6,8)]+[((2,0),(1,0),256),((3,0),(2,0),256),((3,4),(3,0),4),((3,8),(3,0),8)]+[((b,0),(b-1,0),256) for b in range(4,8)]
    cv=[(hh,r) for r in range(0,16,2) for hh in range(2)]
    reg={(0,0):64}; pool=list(range(96,128,2)); done=set(); todo=c1+c2
    for i in range(14):
        x=[]
        for ch in (c1,c2):
            if i<len(ch):
                k,sk,z=ch[i]; reg[k]=pool.pop(0); x.append(cm(reg[k],reg[sk],Z[z])); todo.remove(ch[i])
        for t in (il(*x) if len(x)==2 else x[0]): a(t)
        for (hh,r) in list(cv):
            k0,k1=key(hh,r),key(hh,r+1)
            if k0 in reg and k1 in reg:
                o=r>>2
                for e in range(2): a(f'v_cvt_pk_bf16_f32 v{212+8*o+4*e+2*hh+((r>>1)&1)}, v{reg[k0]+e}, v{reg[k1]+e}')
                cv.remove((hh,r))
                if not any((rr>>2)==o for _,rr in cv):
                    for e in range(2):
                        for t in dsw(212+8*o+4*e,64*e+16*o): a(t)
        live={sk for _,sk,_ in todo}|{key(hh,r+d) for hh,r in cv for d in (0,1)}
        for k in list(reg):
            if k not in live and k not in done:
                done.add(k)
                if reg[k]!=64: pool.append(reg[k])
    assert not cv
    if 'nokp' not in g.opt: a('s_setprio 2')
    for t in trs(96): a(t)
    a('s_add_u32 s13, s13, 1\ns_cmp_lg_u32 s13, 1\ns_cbranch_scc1 L_C_i')
    w0(g,'L_C_i',lambda:a(iload(194)))
    if U2: a('s_cmp_lg_u32 s13, 2\ns_cbranch_scc1 L_C_j'); w0(g,'L_C_j',smpT)
    a('s_cmp_lg_u32 s13, 3\ns_cbranch_scc1 L_C_k0')
    if U2:
        if 'ce2' in g.opt: a('s_setprio 2')
        g.stamp(2)
    else: chkT()
    mf=lambda s:f's_waitcnt lgkmcnt({14-2*s})\nv_mfma_f32_32x32x16_bf16 v[160:175], v[{96+4*s}:{99+4*s}], v[{128+4*s}:{131+4*s}], v[160:175]'
    for s in range(8): a(mf(s))
    a('s_branch L_C_x\n.p2align 3\nL_C_k0:')
    st=list(setup)
    for s in range(8):
        for _ in range(16 if s==0 else 7):
            if st: a(st.pop(0))
        a(mf(s))
    for t in st: a(t)
    if 'cp2' not in g.opt: a('s_setprio 0')
    if 'k3p' in g.opt: a('s_cmp_lg_u32 s13, 2\ns_cbranch_scc1 L_C_k\ns_setprio 2')
    if 'cs' in g.opt: a('s_mov_b32 s84, s86\ns_memrealtime s[86:87]\ns_waitcnt lgkmcnt(0)')
    a('s_branch L_C_k\nL_C_x:')
    if 'cs' in g.opt: g.stamp(4)
    if 'cs' not in g.opt: g.stamp(3)
    a('v_mov_b32 v44, 0\nv_lshl_add_u32 v40, v1, 2, s12\nds_write_b32 v40, v44\nds_write_b32 v40, v44 offset:4224')
    a('v_and_b32 v10, 1, v1\nv_cmp_eq_u32 vcc, 0, v10\nv_bfe_u32 v11, v1, 1, 3\nv_lshrrev_b32 v12, 4, v1')
    a('v_mov_b32 v13, 4240\nv_cndmask_b32 v13, 8, v13, vcc\nv_add_u32 v14, v11, v12\nv_lshl_add_u32 v2, v14, 3, v13\nv_add_u32 v2, s12, v2')
    a(f'v_mov_b32 v13, 640\nv_cndmask_b32 v13, 0, v13, vcc\nv_sub_u32 v14, 7, v11\nv_mul_u32_u24 v14, 144, v14\nv_lshl_add_u32 v14, v12, 3, v14\nv_add3_u32 v4, v13, v14, s69')
    a('v_add_f32 v160, v160, v43')
    P=lambda r:f'v{160+r}'
    a('v_cndmask_b32 v15, v173, v172, vcc\nv_cndmask_b32 v16, v175, v174, vcc')
    taps=[[P(r) for r in range(9)],[P(9)]*3+[P(10)]*3+[P(11)]*3,[P(12)]*4+['v15']+[P(13)]*4,[P(14)]*4+['v16']+[P(15)]*4]
    for k,t in enumerate(taps):
        o=50+10*(k&1)
        for q in range(4): a(f'v_cvt_pk_bf16_f32 v{o+q}, {t[2*q]}, {t[2*q+1]}')
        a(f'ds_write_b128 v42, v[{o}:{o+3}] offset:{64+1024*k}')
        for q in range(4): a(f'v_cvt_pk_bf16_f32 v{o+5+q}, {t[2*q+1]}, {t[2*q+2]}')
        a(f'ds_write_b32 v42, v{o+5} offset:{4224+76+1024*k}\nds_write_b96 v42, v[{o+6}:{o+8}] offset:{4224+80+1024*k}')
    a(f'v_cvt_pk_bf16_f32 v17, 0, v160\ns_mov_b64 exec, 1\nds_write_b32 v42, v17 offset:{4224+72}\ns_mov_b64 exec, -1')
    for n in range(4):
        d=176+4*n; t=20+4*n
        a(f's_waitcnt vmcnt({3-n})')
        a(f'ds_write_b128 v7, v[{d}:{d+3}] offset:{9216+2304*n}\nv_mov_b32 v{t}, v{d+1}\nv_mov_b32 v{t+1}, v{d+2}\nv_mov_b32 v{t+2}, v{d+3}')
        a(f'ds_write_b32 v8, v{d} offset:{9216+640-84+2304*n}\nds_write_b96 v7, v[{t}:{t+2}] offset:{9216+640+2304*n}')
    a('s_waitcnt lgkmcnt(0)\ns_barrier')
    if 'cs' not in g.opt: g.stamp(4)
    if 'cm0' in g.opt: a('s_setprio 0')
    if 'cm2' in g.opt: a('s_setprio 2')
    K=lambda b,x:64+64*(b&1)+4*x
    U=lambda b,x:96+64*(b&1)+4*x
    if 'rd2' in g.opt:
        def rdK(b,x): o=64*(x&3)+8*b; return [f'ds_read2_b64 v[{K(b,x)}:{K(b,x)+3}], v{2+(x>>2)} offset0:{o} offset1:{o+4}']
        def rdU(b,x): s=7-x; o=10*b+80*(s%3); return [f'ds_read2_b64 v[{U(b,x)}:{U(b,x)+3}], v{4+s//3} offset0:{o} offset1:{o+4}']
    else:
        def rdK(b,x): return [f'ds_read_b64 v[{K(b,x)+2*e}:{K(b,x)+2*e+1}], v2 offset:{512*x+64*b+32*e}' for e in range(2)]
        def rdU(b,x): return [f'ds_read_b64 v[{U(b,x)+2*e}:{U(b,x)+2*e+1}], v4 offset:{144*b+1152*(7-x)+32*e}' for e in range(2)]
    def rds(b): return sum([rdK(b,0)]+[rdU(b,x) for x in range(8)]+[rdK(b,x) for x in range(1,8)],[])
    a('.p2align 3')
    for k,t in enumerate(rds(0)):
        a(t)
        if k%8==7 and k>8: a('s_waitcnt lgkmcnt(6)\ns_nop 0')
    for b in range(8):
        nx=rds(b+1) if b<7 else []
        a('s_waitcnt lgkmcnt(0)\ns_nop 0')
        n=0
        for x in range(8):
            for t in range(x,8):
                c='0' if (b==0 and x==0) else f'v[{192+4*t}:{195+4*t}]'
                a(f'v_mfma_f32_16x16x32_bf16 v[{192+4*t}:{195+4*t}], v[{K(b,x)}:{K(b,x)+3}], v[{U(b,t-x)}:{U(b,t-x)+3}], {c}')
                n+=1
                if (n%2==1 or 'rd2' not in g.opt) and nx: a(nx.pop(0))
    g.stamp(5)
    a('s_setprio 3')
    a('s_mul_i32 s13, s5, 20544\nv_lshlrev_b32 v13, 5, v11\nv_lshl_add_u32 v13, v12, 3, v13\nv_lshl_add_u32 v13, v10, 2, v13\nv_add_u32 v13, s13, v13')
    a('v_bfe_u32 v14, v1, 2, 2\nv_mul_u32_u24 v14, 20544, v14\nv_lshl_add_u32 v14, v12, 5, v14\nv_and_b32 v15, 3, v1\nv_lshl_add_u32 v14, v15, 3, v14\ns_lshl_b32 s13, s5, 9\nv_add_u32 v14, s13, v14')
    a('v_and_b32 v15, 60, v1\nv_bfe_u32 v16, v1, 1, 1\nv_lshl_add_u32 v16, v10, 1, v16\nv_add_u32 v15, v15, v16\nv_lshlrev_b32 v15, 4, v15')
    a(f's_lshl_b32 s13, s5, 12\ns_add_u32 s50, s50, s13\ns_add_u32 s50, s50, {AT}')
    for t in range(8):
        d=192+4*t; o=20+2*t
        a(f'v_cvt_pk_bf16_f32 v{o}, v{d}, v{d+2}\nv_cvt_pk_bf16_f32 v{o+1}, v{d+1}, v{d+3}\nds_write2st64_b32 v13, v{o}, v{o+1} offset0:{t} offset1:{t+8}')
    a('s_waitcnt lgkmcnt(0)\ns_barrier')
    for n in range(4): a(f'ds_read_b64_tr_b16 v[{40+4*n}:{41+4*n}], v14 offset:{128*n}\nds_read_b64_tr_b16 v[{42+4*n}:{43+4*n}], v14 offset:{2048+128*n}')
    for n in range(4): a(f's_waitcnt lgkmcnt({6-2*n})\nbuffer_store_dwordx4 v[{40+4*n}:{43+4*n}], v15, s[52:55], s50 offen offset:{1024*n} sc1')
    a(f's_lshl_b32 s13, s3, 5\ns_add_u32 s13, s13, s4\ns_lshl_b32 s13, s13, 2\ns_add_u32 s13, s13, {FA-48}\nv_lshlrev_b32 v3, 10, v1')
    if 'ap' in g.opt or 'ap8' in g.opt: a(f's_lshl_b32 s13, s10, 7\ns_add_u32 s13, s13, {FQ}\nv_mul_u32_u24 v3, 20480, v1')
    g.stamp(6)
    g.wait0(); a('s_barrier')
    w0(g,'L_C_s',lambda:post(g,2,3,'s13'),1 if 'ap' in g.opt else 8)
    g.dump('L_C_d')
    a('s_endpgm\nL_C_end:')
```

```python
from common import *
def role_F(g):
    a=g.a; g.vm=[]; o=g.opt
    a('.p2align 3\nL_F:')
    g.pref('F',3,255)
    a(f's_setprio {3 if "f3" in o else 1}\ns_lshl_b32 s98, s3, 7\ns_add_u32 s98, s98, {FW}\nv_lshlrev_b32 v253, 2, v1')
    a('s_and_b32 s10, s3, 3\ns_lshl_b32 s10, s10, 2\ns_and_b32 s11, s4, 3\ns_add_u32 s10, s10, s11')
    a('s_lshr_b32 s11, s3, 2\ns_lshl_b32 s11, s11, 3\ns_lshr_b32 s12, s4, 2\ns_add_u32 s11, s11, s12')
    a('s_and_b32 s12, s5, 1\ns_lshr_b32 s13, s5, 1')
    a('s_mul_i32 s14, s12, 192\ns_lshl_b32 s15, s13, 1\ns_mul_i32 s50, s10, 192\ns_mov_b32 s51, 0x15555556')
    for i in range(3):
        a(f'v_add_u32 v2, s14, v1' if i==0 else 'v_add_u32 v2, 64, v2')
        a(f'v_mul_hi_u32 v3, v2, s51\nv_mul_u32_u24 v4, 12, v3\nv_sub_u32 v4, v2, v4\nv_xor_b32 v4, s15, v4\nv_lshlrev_b32 v4, 4, v4\nv_mul_u32_u24 v3, 3072, v3\nv_add3_u32 v{215+i}, v3, v4, s50')
        if 'fakew' in o: a(f's_mul_i32 s72, s10, 3\ns_lshr_b32 s72, s72, 2\ns_lshl_b32 s72, s72, 8\ns_sub_u32 s72, s72, {1024*i}\nv_lshrrev_b32 v3, 4, v2\nv_and_b32 v4, 15, v2\nv_lshlrev_b32 v4, 4, v4\nv_mul_u32_u24 v3, 3072, v3\nv_add3_u32 v{215+i}, v3, v4, s72')
        if i<2: a('s_sub_u32 s50, s50, 1024')
    a('s_lshl_b32 s14, s11, 2\ns_add_u32 s14, s14, s5\ns_mul_i32 s14, s14, 40960')
    a('v_lshrrev_b32 v2, 3, v1\nv_mul_u32_u24 v2, 1280, v2\nv_and_b32 v3, 7, v1\nv_lshrrev_b32 v4, 4, v1\nv_xor_b32 v3, v3, v4\nv_lshlrev_b32 v3, 4, v3\nv_xor_b32 v5, 64, v3')
    a('v_add3_u32 v218, v2, v3, s14\ns_add_u32 s14, s14, 9216\nv_add3_u32 v219, v2, v5, s14\nv_add_u32 v220, 18432, v218\nv_add_u32 v221, 18432, v219')
    if 'rot0' in o: a('s_mov_b32 s99, 0\ns_mov_b32 s100, 0')
    else:
        a('s_lshr_b32 s99, s4, 2')
        if 'rot1' not in o: a('s_and_b32 s100, s4, 3\ns_lshl_b32 s100, s100, 1\ns_add_u32 s99, s99, s100\ns_and_b32 s99, s99, 7')
        a('s_mul_i32 s99, s99, 5\ns_lshr_b32 s99, s99, 2\ns_lshl_b32 s100, s99, 7\ns_mul_i32 s99, s99, 196608')
    a('s_mul_i32 s70, s5, 3072\ns_lshl_b32 s71, s5, 12\ns_add_u32 s71, s71, 49152')
    g.pstamp(2)
    a('s_cmp_eq_u32 s13, 0\ns_waitcnt lgkmcnt(0)\ns_cselect_b32 s64, s36, s38\ns_cselect_b32 s65, s37, s39\ns_mov_b32 s66, 1966080\ns_mov_b32 s67, 0x20000')
    g.srd(60,16,2621440); g.pstamp(3)
    def dW(b):
        r=[f's_add_u32 m0, s70, {(b%4)*12288}']
        if b: r+=['s_add_u32 s99, s99, 98304']
        if b and b%2==0: r+=['s_cmp_eq_u32 s99, 1966080','s_cselect_b32 s99, 0, s99']
        return r+[(f'buffer_load_dwordx4 v{215+i}, s[64:67], s99 offen offset:{1024*i} lds',f'W{b}') for i in range(3)]
    def dX(n,h=None):
        r=[f's_add_u32 m0, s71, {(n%2)*16384}']
        if n and h!=1: r+=['s_add_u32 s100, s100, 128','s_cmp_eq_u32 s100, 1280','s_cselect_b32 s100, 0, s100']
        return r+[(f'buffer_load_dwordx4 v{218+i}, s[60:63], s100 offen offset:{1024*i} lds',f'X{n}') for i in (range(4) if h is None else range(2*h,2*h+2))]
    def dD(kind,slot,n0):
        if kind=='w': r=[f's_add_u32 m0, s70, {slot*12288}']; c=3
        else: r=[f's_add_u32 m0, s71, {slot*16384}']; c=4
        r.append(f's_add_u32 s72, s74, {(25+n0)*1024}')
        return r+[(f'buffer_load_dwordx4 v244, s[52:55], s72 offen offset:{1024*i} sc1 lds','D') for i in range(c)]
    def em(x):
        if isinstance(x,tuple):
            if x[1][0] in 'HRD' and 'nsc' in o: x=(x[0].replace(' sc1',''),x[1])
            if x[1][0] in 'HRD' and 'nnt' in o: x=(x[0].replace(' sc1',' nt'),x[1])
            if x[1][0] in 'WX' and 'gnt' in o: x=(x[0].replace(' lds',' nt lds'),x[1])
            if x[1][0] in 'WX' and 'gsc' in o: x=(x[0].replace(' lds',' sc1 lds'),x[1])
            if 'fakev' in o and x[0].endswith(' lds'): x=(x[0][:-4].replace('dwordx4 ','dwordx4 v[224:227], '),x[1])
            g.v(*x)
        else: a(x)
    d0=[dW(0),dX(0),dW(1),dW(2),dX(1),dW(3)]; NP=next((int(x[3:]) for x in o if x[:3] in('pra','prb')),6); PB=any(x[:3]=='prb' for x in o)
    for x in sum(d0[:NP],[]): em(x)
    d0=sum(d0[NP:],[])
    g.pstamp(4)
    g.srd(52,48,0x1000000); g.srd(56,46,256); g.srd(76,44,2621440)
    a('v_bfe_u32 v2, v1, 4, 1\nv_lshrrev_b32 v3, 5, v1\nv_bfe_u32 v4, v1, 2, 2\nv_lshl_add_u32 v4, v3, 3, v4\nv_mul_u32_u24 v4, 192, v4\nv_mul_u32_u24 v5, 6144, v2\nv_and_b32 v6, 3, v1\nv_lshlrev_b32 v6, 3, v6\nv_add3_u32 v4, v4, v5, v6')
    a('s_mul_i32 s14, s13, 3')
    for jj in range(3): a(f'v_xor_b32 v5, s14, v2\nv_lshl_add_u32 v{208+jj}, v5, 5, v4\ns_add_u32 s14, s14, 1')
    a('v_and_b32 v4, 31, v1\nv_bfe_u32 v5, v1, 1, 3\nv_xor_b32 v5, v5, v3\nv_lshlrev_b32 v4, 7, v4\ns_lshl_b32 s14, s12, 13\ns_add_u32 s14, s14, 49152\nv_add_u32 v4, s14, v4')
    for u in range(4): a(f'v_xor_b32 v6, {2*u}, v5\nv_lshl_add_u32 v{211+u}, v6, 4, v4')
    a('v_lshlrev_b32 v244, 4, v1')
    a('s_lshl_b32 s68, s3, 2\ns_lshr_b32 s69, s4, 3\ns_add_u32 s68, s68, s69\ns_and_b32 s69, s4, 7')
    a(f's_lshl_b32 s74, s69, 2\ns_add_u32 s74, s74, s5\ns_mul_i32 s74, s74, 61440\ns_add_u32 s74, s74, {WDF}')
    a(f's_lshl_b32 s75, s68, 2\ns_add_u32 s75, s75, s5\ns_mul_i32 s75, s75, 49152')
    a('v_lshlrev_b32 v4, 11, v3\nv_lshl_add_u32 v4, v2, 9, v4\nv_and_b32 v5, 15, v1\nv_lshl_add_u32 v4, v5, 4, v4')
    a('s_lshl_b32 s14, s12, 8\ns_lshl_b32 s15, s13, 10\ns_add_u32 s14, s14, s15\nv_add_u32 v245, s14, v4\nv_xor_b32 v246, 256, v245\nv_xor_b32 v247, 1024, v245\nv_xor_b32 v248, 1280, v245')
    a('v_add_u32 v249, s70, v244\nv_add_u32 v250, s71, v244\nv_mov_b32 v251, v1')
    a('s_lshl_b32 s50, s11, 1\ns_add_u32 s50, s50, s12\ns_lshl_b32 s50, s50, 4\ns_add_u32 s50, s50, s10\ns_lshl_b32 s50, s50, 1\ns_add_u32 s50, s50, s13\ns_mul_i32 s50, s50, 6144\ns_add_u32 s51, s50, 4096')
    WF=lambda b,jj,u:96+24*(b&1)+8*jj+4*u
    XF=lambda n,tt,u:144+32*(n&1)+16*tt+4*u
    def rW(b): return [f'ds_read_b64_tr_b16 v[{WF(b,jj,u)+2*e}:{WF(b,jj,u)+2*e+1}], v{208+jj} offset:{(b%4)*12288+(16*u+4*e)*192}' for u in range(2) for jj in range(3) for e in range(2)]
    def rX(n): return [f'ds_read_b128 v[{XF(n,tt,u)}:{XF(n,tt,u)+3}], v{211+u} offset:{(n%2)*16384+4096*tt}' for u in range(4) for tt in range(2)]
    if not PB:
        for x in d0: em(x)
        d0=[]
    g.wait('W0','X0'); a('s_barrier')
    if 'g2s' not in o: g.stamp(1)
    for k,x in enumerate(rX(0)+rW(0)):
        a(x)
        if k==11: a('s_waitcnt lgkmcnt(6)')
    for x in d0: em(x)
    a('.p2align 3')
    for b in range(20):
        tags=[f'W{b+1}']+([f'X{(b+1)//2}'] if b&1 else [])
        if b in (11,15): tags.append('fl')
        g.wait(*tags,lgkm=0)
        if b==11: w0(g,'L_F_i',lambda:spin2(g,'L_F_I',223,iload(223))); a('.p2align 3\ns_nop 0')
        if b==15: w0(g,'L_F_p',lambda:spin2(g,'L_F_W',223,fload(223,253,'s98')),32); a('.p2align 3\ns_nop 0')
        a('s_barrier')
        dm=[]; fl=[]
        if 'fp3' in o and b==10: a('s_setprio 3')
        if b+4<20: dm+=dW(b+4)
        if 'burst' in o:
            if b%2==0 and b//2+2<10: dm+=dX(b//2+2)
        elif b//2+2<10:
            dm+=dX(b//2+2,b&1)
        if b==8: fl=['s_mov_b64 exec, 1',(iload(223),'fl'),'s_mov_b64 exec, -1']
        if b==12: fl=['s_mov_b32 exec_hi, 0',(fload(223,253,'s98'),'fl'),'s_mov_b64 exec, -1']
        if b==15 and ('wt' in o or 'wu' in o):
            sc=' sc1' if 'wt' in o else ''
            fl=['s_and_b32 s72, s68, 3','s_mul_i32 s72, s72, 15360','s_add_u32 s72, s72, s74','v_min_u32 v224, 59, v251','v_lshlrev_b32 v224, 8, v224',
                ('buffer_load_dword v225, v224, s[52:55], s72 offen'+sc,'wt'),('buffer_load_dword v226, v224, s[52:55], s72 offen offset:128'+sc,'wt')]
        if b==16: dm+=dD('w',0,0)+dD('x',0,3)
        if b==17: dm+=dD('w',1,7)
        if b==18: dm+=dD('w',2,10)+dD('x',1,13)
        if b==19: dm+=dD('w',3,17)
        rd=[]
        if b<19:
            w=rW(b+1)
            if b&1:
                x=rX((b+1)//2); rd=x[:2]+w[:6]+x[2:4]+w[6:]+x[4:]
            else: rd=w
        if 'nord' in o: rd=[]
        if 'nodma' in o and b<16: dm=[]
        n=0; nd=sum(isinstance(x,tuple) for x in dm); pos=range(12) if 'burst' in o else {0:[],3:[0,4,8],5:[0,2,5,7,9],7:[0,1,3,5,6,8,10]}[nd]
        for u in range(2):
            for jj in range(3):
                for tt in range(2):
                    d=16*(2*jj+tt); c='0' if (b==0 and u==0) else f'v[{d}:{d+15}]'
                    xf=XF(b//2,tt,2*(b&1)+u); wf=WF(b,jj,u)
                    if 'nomf' not in o: a(f'v_mfma_f32_32x32x16_bf16 v[{d}:{d+15}], v[{wf}:{wf+3}], v[{xf}:{xf+3}], {c}')
                    k=2 if len(rd)<=2*(10-n) else 3
                    for _ in range(k):
                        if rd: a(rd.pop(0))
                    if n in pos:
                        while dm:
                            x=dm.pop(0); em(x)
                            if isinstance(x,tuple): break
                    n+=1
        assert not rd
        for x in dm+fl: em(x)
    if 'g2s' not in o: g.stamp(2)
    for jj in range(3):
        for tt in range(2):
            d=16*(2*jj+tt); h=96+4*(2*jj+tt)
            for r in range(8): a(f'v_mul_f32 v{d+r}, v{d+r}, v{d+8+r}')
            for q in range(4): a(f'v_cvt_pk_bf16_f32 v{h+q}, v{d+2*q}, v{d+2*q+1}')
            off=jj*2048+tt*1024
            g.v(f'buffer_store_dwordx4 v[{h}:{h+3}], v244, s[52:55], s{50+off//4096} offen offset:{off%4096} sc1','hs')
    R=lambda k,j:80+20*k+4*j
    H=lambda s,m:180+16*(s&3)+4*m
    def lR(k,s):
        return [f's_add_u32 s72, s74, {s*5120}',f's_add_u32 s73, s74, {s*5120+4096}']+[(f'buffer_load_dwordx4 v[{R(k,j)}:{R(k,j)+3}], v244, s[52:55], s{72+j//4} offen offset:{(j&3)*1024} sc1',f'R{s}') for j in range(5)]
    def lH(s):
        return [f's_add_u32 s14, s75, {HF+s*4096}']+[(f'buffer_load_dwordx4 v[{H(s,m)}:{H(s,m)+3}], v{245+m}, s[52:55], s14 offen sc1',f'H{s}') for m in range(4)]
    def lL(k,s):
        r=[]
        for j in range(5):
            n=(s-5)*5+j
            for (n0,c,v,off) in ((0,3,249,0),(3,4,250,0),(7,3,249,12288),(10,3,249,24576),(13,4,250,16384),(17,3,249,36864)):
                if n0<=n<n0+c: r.append(f'ds_read_b128 v[{R(k,j)}:{R(k,j)+3}], v{v} offset:{off+(n-n0)*1024}')
        return r
    a(f's_lshl_b32 s11, s11, 5\ns_add_u32 s10, s10, s11\ns_lshl_b32 s10, s10, 2\ns_add_u32 s10, s10, {FH}\ns_lshr_b32 s11, s68, 1\ns_lshl_b32 s11, s11, 7\ns_add_u32 s11, s11, {FH}\ns_lshl_b32 s15, s3, 3\ns_add_u32 s15, s15, s69\ns_lshl_b32 s15, s15, 7\ns_add_u32 s15, s15, {FA}')
    HV=253
    if 'hp' in o:
        a(f's_sub_u32 s72, s10, {FH}\ns_and_b32 s73, s72, 63\ns_lshr_b32 s72, s72, 7\ns_lshl_b32 s72, s72, 6\ns_add_u32 s72, s72, s73\ns_lshl_b32 s72, s72, 5\ns_add_u32 s10, s72, {FP}')
        a(f's_sub_u32 s11, s11, {FH}\ns_lshl_b32 s11, s11, 4\ns_add_u32 s11, s11, {FP}\nv_lshlrev_b32 v254, 7, v251'); HV=254
    AV=253; AX='s_mov_b32 exec_hi, 0'
    if 'ap' in o: a(f's_mul_i32 s15, s69, 2560\ns_add_u32 s15, s15, {FQ}'); AV=254; AX='s_mov_b64 exec, 0xfffff'
    if 'ap8' in o: a(f's_lshl_b32 s15, s3, 3\ns_add_u32 s15, s15, s69\ns_mul_i32 s15, s15, 2560\ns_add_u32 s15, s15, {FQ}'); AV=254; AX='s_mov_b64 exec, 0xfffff'
    KE=next((int(x[2:]) for x in o if x.startswith('ke')),None)
    if KE is not None:
        a('s_barrier')
        if 'smp' in o: a('s_mov_b64 exec, 0xffff'); g.v(fload(252,HV,'s11'),'fl'); a('s_mov_b64 exec, -1')
        for k in range(5-KE,5):
            for x in lR(k,k): em(x)
        g.wait('hs','fl')
    elif 'early' in o:
        for k in range(2,5):
            for x in lR(k,k): em(x)
        g.wait('hs')
    else: g.wait0()
    a('s_barrier')
    if 'g2s' not in o: g.stamp(3)
    w0(g,'L_F_s',lambda:post(g,2,253,'s10'))
    if 'f3' in o or 'fp3' in o: a('s_setprio 1')
    for k in range(5-KE if KE is not None else 2 if 'early' in o else 5):
        for x in lR(k,k): em(x)
    if 'pt' in o:
        a(f'v_min_u32 v3, 59, v251\nv_lshlrev_b32 v3, 8, v3\ns_add_u32 s72, s74, {9*5120}')
        g.v('buffer_load_dword v4, v3, s[52:55], s72 offen sc1','pt'); g.v('buffer_load_dword v5, v3, s[52:55], s72 offen offset:128 sc1','pt')
    if 'smp' in o: w0(g,'L_F_h',lambda:spin2(g,'L_F_H',252,fload(252,HV,'s11')),16)
    else: w0(g,'L_F_h',lambda:(a('v_mov_b32 v2, 0'),spin2(g,'L_F_H',2,fload(2,HV,'s11'))),16)
    a('s_barrier')
    g.stamp(4)
    for s in range(4):
        for x in lH(s): em(x)
        if s==0 and 'ht' in o:
            a(f's_lshl_b32 s72, s69, 12\ns_add_u32 s72, s72, s75\ns_add_u32 s72, s72, {HF+16384}\nv_lshlrev_b32 v254, 6, v251')
            g.v('buffer_load_dword v255, v254, s[52:55], s72 offen sc1','pt')
        if s==0 and 'ht4' in o:
            a(f's_add_u32 s72, s75, {HF+16384}\nv_lshlrev_b32 v254, 7, v251')
            for q in range(4): g.v('buffer_load_dword v255, v254, s[52:55], s72 offen','pq'); a('s_add_u32 s72, s72, 8192')
    RK=[0,1,2,3,4,0,4,0,4,1,2,3]; SA=10 if 'a10' in o else 11 if 'a11' in o else 8
    RS={'rsA':[0,0,2,2,2,2,2,2,3],'rsB':[0,0,1,1,1,2,2,3,5],'rsC':[0,0,3,3,3,2,2,2,0],'rsD':[0,0,1,1,2,2,2,3,4]}; RS=next((RS[x]+[0]*3 for x in o if x in RS),None)
    rq=lR(1,9)+lR(2,10)+lR(3,11); EO='eo' in o
    assert not EO or SA==10
    a('.p2align 3')
    for s in range(11 if EO else 12):
        tags=[f'H{s}',f'R{s}']+(['H11','R11'] if EO and s==10 else [])
        if s==SA: tags.append('fl')
        g.wait(*tags,lgkm=(0 if s==8 else 5) if 5<=s<=8 else None)
        if 'g2s' in o and s in (0,4,8,SA): g.stamp({0:1,4:2,8:3,SA:6}[s])
        if s==SA:
            if 'noC' not in o: w0(g,'L_F_a',lambda:spin2(g,'L_F_A',252,fload(252,AV,'s15')),20)
            a('s_barrier\n.p2align 3')
        k=RK[s]
        if s==SA and SA>8:
            for j in range(5): em((f'buffer_load_dwordx2 v[{180+2*j}:{181+2*j}], v195, s[52:55], s96 offen sc1','A')); a('s_add_u32 s96, s96, 65536')
            em((f'buffer_load_dwordx2 v[190:191], v194, s[52:55], s97 offen sc1','A'))
        if EO and s==10:
            for m in (1,2,3,0):
                for n in range(10):
                    j=n%5; t=10+n//5; d=16*j+4*m; mu=(m-1)&3
                    a(f'v_mfma_f32_16x16x32_bf16 v[{d}:{d+3}], v[{R(RK[t],j)}:{R(RK[t],j)+3}], v[{H(t,m)}:{H(t,m)+3}], v[{d}:{d+3}]')
                    if mu and 2<=n<7: j=n-2; a(f'ds_write_b128 v{195+mu}, v[{16*j+4*mu}:{16*j+4*mu+3}] offset:{(mu-1)*5120+j*1024}')
            continue
        rp={0:[],1:[7],2:[2,12],3:[2,7,12],4:[2,7,12,17],5:[1,5,9,13,17]}[RS[s]] if RS else []
        for m in range(4):
            for j in range(5):
                d=16*j+4*m; c='0' if s==0 else f'v[{d}:{d+3}]'
                a(f'v_mfma_f32_16x16x32_bf16 v[{d}:{d+3}], v[{R(k,j)}:{R(k,j)+3}], v[{H(s,m)}:{H(s,m)+3}], {c}')
                if 5*m+j in rp:
                    while True:
                        x=rq.pop(0); em(x)
                        if isinstance(x,tuple): break
            if s+4<12:
                x=lH(s+4)
                if m==0: em(x[0])
                em(x[1+m])
        pst=[]
        if s==0: pst=lL(0,5)
        if s in(1,2,3) and not RS: pst=lR(s,s+8)
        if s in(4,5,6): pst=lL(RK[s+2],s+2)
        if s==SA-(4 if SA==8 else 3): pst+=[AX,(fload(252,AV,'s15'),'fl'),'s_mov_b64 exec, -1']
        if s==8:
            pst+=['v_and_b32 v192, 15, v251','v_lshrrev_b32 v193, 4, v251','v_lshlrev_b32 v194, 3, v192','v_lshl_add_u32 v195, v193, 14, v194',
                  's_lshl_b32 s14, s68, 2','s_add_u32 s14, s14, s5','s_lshl_b32 s10, s14, 7',f's_add_u32 s11, s10, {GG}',f's_mul_i32 s72, s69, {20*16384}','s_add_u32 s72, s72, s10',f's_add_u32 s72, s72, {AT}']
            pst+=['s_mov_b32 s96, s72','s_mov_b32 s97, s11']
        if s==SA:
            pa=[]
            for j in range(5): pa+=[(f'buffer_load_dwordx2 v[{180+2*j}:{181+2*j}], v195, s[52:55], s96 offen sc1','A'),'s_add_u32 s96, s96, 65536']
            pa.append((f'buffer_load_dwordx2 v[190:191], v194, s[52:55], s97 offen sc1','A'))
            if SA==8: pst+=pa
        if s==9:
            for mu in range(1,4): pst+=[f's_xor_b32 s10, s5, {mu}','s_mul_i32 s10, s10, 15360',f'v_add_u32 v{195+mu}, s10, v244']
            pst+=['s_mul_i32 s10, s5, 15360','v_add_u32 v199, s10, v244','s_lshl_b32 s10, s5, 12','s_add_u32 s10, s10, 61440',
                   'v_mul_u32_u24 v200, 176, v192','v_lshl_add_u32 v200, v193, 3, v200','v_add_u32 v200, s10, v200','s_mov_b32 s11, 0x1999999a',
                   's_mul_i32 s14, s14, 20480','s_mul_i32 s72, s69, 160','s_add_u32 s14, s14, s72']
            for n in range(3):
                pst+=[f'v_add_u32 v207, {64*n}, v251','v_mul_hi_u32 v208, v207, s11','v_add_u32 v209, v207, v208',f'v_lshl_add_u32 v{201+n}, v209, 4, s10','v_mul_u32_u24 v208, 1120, v208',f'v_lshl_add_u32 v{204+n}, v207, 4, v208']
        for x in pst: em(x)
    g.stamp(5)
    assert not RS or not rq
    for mu in range(1,1 if EO else 4):
        for j in range(5): a(f'ds_write_b128 v{195+mu}, v[{16*j+4*mu}:{16*j+4*mu+3}] offset:{(mu-1)*5120+j*1024}')
    a('s_waitcnt lgkmcnt(0)\ns_barrier')
    for j in range(5):
        for k in range(3): a(f'ds_read_b128 v[{16*j+4*k+4}:{16*j+4*k+7}], v199 offset:{k*5120+j*1024}')
    g.wait('A')
    for j in range(5):
        t=80+4*j
        a(f'v_lshlrev_b32 v{t}, 16, v{180+2*j}\nv_and_b32 v{t+1}, 0xffff0000, v{180+2*j}\nv_lshlrev_b32 v{t+2}, 16, v{181+2*j}\nv_and_b32 v{t+3}, 0xffff0000, v{181+2*j}')
        for r in range(4): a(f'v_mul_f32 v{t+r}, v190, v{t+r}')
    for j in range(5):
        t=80+4*j; d=16*j
        a(f's_waitcnt lgkmcnt({12-3*j+j})')
        for r in range(4): a(f'v_add_f32 v{d+r}, v{d+r}, v{d+4+r}\nv_add_f32 v{d+8+r}, v{d+8+r}, v{d+12+r}')
        for r in range(4): a(f'v_add_f32 v{d+r}, v{d+r}, v{d+8+r}')
        for r in range(4): a(f'v_fmac_f32 v{t+r}, v191, v{d+r}')
        a(f'v_cvt_pk_bf16_f32 v{t}, v{t}, v{t+1}\nv_cvt_pk_bf16_f32 v{t+1}, v{t+2}, v{t+3}\nds_write_b64 v200, v[{t}:{t+1}] offset:{32*j}')
    for n in range(3): a(f'ds_read_b128 v[{100+4*n}:{103+4*n}], v{201+n}')
    for n in range(3):
        a(f's_waitcnt lgkmcnt({2-n})')
        if n==2: a('s_mov_b32 exec_hi, 0')
        a(f'buffer_store_dwordx4 v[{100+4*n}:{103+4*n}], v{204+n}, s[76:79], s14 offen'+(' sc1' if 'osc' in o else ' nt' if 'ont' in o else ' sc0 sc1' if 'os2' in o else ' sc0 sc1 nt' if 'os3' in o else ''))
    if 'g2s' not in o: g.stamp(6)
    if 'st' in o: a('s_waitcnt vmcnt(0)')
    g.dump('L_F_d')
    a('s_endpgm\nL_F_end:')
```

```python
from common import *
def role_T(g):
    a=g.a; g.vm=[]
    a('.p2align 3\nL_T:\ns_setprio 3')
    g.pref('T',3,255)
    a('s_lshl_b32 s10, s3, 3\ns_add_u32 s10, s10, s4')
    a('v_lshrrev_b32 v2, 4, v1\nv_and_b32 v3, 15, v1\nv_lshlrev_b32 v4, 4, v3')
    a('v_mul_u32_u24 v5, 1280, v2\nv_add_u32 v5, v5, v4')
    a('s_lshl_b32 s11, s10, 2\ns_add_u32 s11, s11, s5\ns_mul_i32 s12, s11, 10240\ns_add_u32 s13, s12, 5120')
    a('s_waitcnt lgkmcnt(0)')
    g.srd(60,16,2621440); g.srd(64,42,1280); g.srd(52,48,0x1000000); g.srd(56,46,256)
    for m in range(2):
        for i in range(5): g.v(f'buffer_load_dwordx4 v[{10+m*20+i*4}:{13+m*20+i*4}], v5, s[60:63], s{12+m} offen offset:{i*256}',f'x{m}{i}')
    for i in range(5): g.v(f'buffer_load_dwordx4 v[{50+i*4}:{53+i*4}], v4, s[64:67], 0 offen offset:{i*256}','gw')
    a(f's_mul_i32 s14, s5, {8*1312+128}\nv_mul_u32_u24 v6, 1312, v2\nv_add3_u32 v6, v6, v4, s14')
    a(f'v_sub_u32 v7, 3, v2\nv_mul_u32_u24 v7, {8*1312+128}, v7\nv_bfe_u32 v8, v1, 2, 2\nv_sub_u32 v8, 3, v8\nv_mul_u32_u24 v8, 1312, v8')
    a('v_and_b32 v9, 3, v1\nv_lshlrev_b32 v70, 3, v9\ns_mul_i32 s14, s5, 320\nv_add3_u32 v7, v7, v8, v70\nv_add_u32 v7, s14, v7')
    a('v_bfe_u32 v8, v1, 2, 2\nv_lshlrev_b32 v8, 14, v8\nv_lshlrev_b32 v70, 6, v2\nv_lshlrev_b32 v9, 4, v9\nv_add3_u32 v8, v8, v70, v9')
    a(f's_mul_i32 s14, s5, {40*16384}\ns_lshl_b32 s15, s10, 8\ns_sub_u32 s14, s14, s15\ns_add_u32 s14, s14, {UT+252*64}')
    for m in range(2):
        for i in range(5):
            g.wait(f'x{m}{i}')
            a(f'ds_write_b128 v6, v[{10+m*20+i*4}:{13+m*20+i*4}] offset:{m*5248+i*256}')
    a('s_waitcnt lgkmcnt(0)\ns_barrier')
    for q in range(10):
        a(f'ds_read_b64_tr_b16 v[{72+q*4}:{73+q*4}], v7 offset:{5248+q*32}\nds_read_b64_tr_b16 v[{74+q*4}:{75+q*4}], v7 offset:{q*32}')
        if q>=3:
            a('s_waitcnt lgkmcnt(6)')
            g.v(f'buffer_store_dwordx4 v[{72+(q-3)*4}:{75+(q-3)*4}], v8, s[52:55], s14 offen sc1'); a('s_add_u32 s14, s14, 65536')
    for q in range(7,10):
        a(f's_waitcnt lgkmcnt({(9-q)*2})')
        g.v(f'buffer_store_dwordx4 v[{72+q*4}:{75+q*4}], v8, s[52:55], s14 offen sc1'); a('s_add_u32 s14, s14, 65536')
    g.wait('gw')
    a('v_mov_b32 v112, 0\nv_mov_b32 v113, 0\ns_mov_b32 s15, 0xffff0000')
    for i in range(20):
        a(f'v_lshlrev_b32 v121, 16, v{50+i}\nv_and_b32 v122, s15, v{50+i}')
        for m in range(2):
            x=10+m*20+i
            a(f'v_lshlrev_b32 v123, 16, v{x}\nv_and_b32 v{x}, s15, v{x}\nv_fmac_f32 v{112+m}, v123, v121\nv_fmac_f32 v{112+m}, v{x}, v122')
    for sh in (8,4,2,1):
        for m in range(2): a(f'v_add_f32_dpp v{112+m}, v{112+m}, v{112+m} row_ror:{sh} row_mask:0xf bank_mask:0xf')
    a('v_cvt_pk_bf16_f32 v114, v112, v113\nv_lshlrev_b32 v112, 16, v114\nv_and_b32 v113, 0xffff0000, v114')
    for m in range(2): a(f'v_mul_f32 v{112+m}, 0xbfb8aa3b, v{112+m}')
    for m in range(2): a(f'v_exp_f32 v{112+m}, v{112+m}')
    for m in range(2): a(f'v_add_f32 v{112+m}, 1.0, v{112+m}')
    for m in range(2): a(f'v_rcp_f32 v{112+m}, v{112+m}')
    a('v_cvt_pk_bf16_f32 v114, v112, v113\nv_lshlrev_b32 v116, 16, v114\nv_and_b32 v118, 0xffff0000, v114')
    a('v_sub_f32 v112, 1.0, v116\nv_sub_f32 v113, 1.0, v118\nv_cvt_pk_bf16_f32 v114, v112, v113\nv_lshlrev_b32 v117, 16, v114\nv_and_b32 v119, 0xffff0000, v114')
    a(f's_lshl_b32 s11, s11, 6\ns_add_u32 s11, s11, {GG}\nv_lshlrev_b32 v2, 3, v2')
    a('s_mov_b32 exec_lo, 0x10001\ns_mov_b32 exec_hi, 0x10001')
    a('buffer_store_dwordx2 v[116:117], v2, s[52:55], s11 offen sc1\nbuffer_store_dwordx2 v[118:119], v2, s[52:55], s11 offen offset:32 sc1\ns_mov_b64 exec, -1')
    w0(g,'L_T_i',lambda:a(iload(120)))
    a(f's_lshl_b32 s10, s10, 2\ns_add_u32 s10, s10, {FT}\nv_lshlrev_b32 v3, 8, v1')
    g.stamp(1)
    g.wait0(); a('s_barrier')
    w0(g,'L_T_s',lambda:(spin2(g,'L_T_I',120,iload(120)),a('s_mov_b64 exec, 0xff'),post(g,2,3,'s10')))
    g.dump('L_T_d')
    a('s_endpgm\nL_T_end:')
def role_W(g):
    a=g.a; g.vm=[]
    a('.p2align 3\nL_W:\ns_setprio '+('3' if 'f3' in g.opt else '2'))
    g.pref('W',3,255)
    a('s_lshl_b32 s10, s3, 2\ns_add_u32 s10, s10, s4\ns_sub_u32 s10, s10, 8')
    a('v_lshrrev_b32 v2, 4, v1\nv_and_b32 v3, 15, v1\nv_lshlrev_b32 v4, 4, v3')
    a('v_mul_u32_u24 v5, 1280, v2\nv_add_u32 v5, v5, v4')
    a('s_lshl_b32 s11, s10, 2\ns_add_u32 s11, s11, s5\ns_mul_i32 s12, s11, 15360\ns_add_u32 s13, s12, 5120\ns_add_u32 s14, s12, 10240')
    a('s_waitcnt lgkmcnt(0)')
    g.srd(60,40,1966080); g.srd(52,48,0x1000000); g.srd(56,46,256)
    a(f's_cmp_lg_u32 s10, 0\ns_cbranch_scc1 L_W_y\nv_mov_b32 v72, 0\nv_mov_b32 v73, 0\nv_mov_b32 v74, 0\nv_mov_b32 v75, 0\nv_lshlrev_b32 v76, 4, v0\ns_mov_b32 s15, {FL}\n'+iload(78))
    for i in range(4): a('buffer_store_dwordx4 v[72:75], v76, s[52:55], s15 offen sc1\ns_add_u32 s15, s15, 4096')
    if 'hp' in g.opt: a('v_lshlrev_b32 v76, 7, v0\nbuffer_store_dword v72, v76, s[52:55], s15 offen sc1')
    if 'ap' in g.opt: a('s_add_u32 s15, s15, 0x8000\nbuffer_store_dword v72, v76, s[52:55], s15 offen sc1')
    if 'ap8' in g.opt:
        for i in range(5): a('s_add_u32 s15, s15, 0x8000\nbuffer_store_dword v72, v76, s[52:55], s15 offen sc1')
    if 'wl' in g.opt:
        a('s_branch L_W_w\nL_W_y:')
        w0(g,'L_W_v',lambda:(a('v_mov_b32 v140, 0'),spin2(g,'L_W_J',140,iload(140))))
        a('s_barrier\nL_W_w:')
    else: a('L_W_y:')
    for m in range(3):
        for i in range(5):
            g.v(f'buffer_load_dwordx4 v[{10+m*20+i*4}:{13+m*20+i*4}], v5, s[60:63], s{12+m} offen offset:{i*256}',f'x{m}{i}')
            if 'wl2' in g.opt and m==0 and i==0:
                g.wait0()
                a('s_cmp_lg_u32 s10, 0\ns_cbranch_scc1 L_W_z\ns_barrier')
                w0(g,'L_W_z',lambda:a('v_mov_b32 v77, 1\nbuffer_store_dword v77, off, s[56:59], 0 sc1'))
    if 'wl2' not in g.opt:
        a('s_cmp_lg_u32 s10, 0\ns_cbranch_scc1 L_W_z\ns_waitcnt vmcnt(15)\ns_barrier')
        w0(g,'L_W_z',lambda:a('v_mov_b32 v77, 1\nbuffer_store_dword v77, off, s[56:59], 0 sc1\ns_waitcnt vmcnt(0)'))
    a(f's_mul_i32 s15, s5, {12*1312}\nv_mul_u32_u24 v6, 1312, v2\nv_add3_u32 v6, v6, v4, s15')
    a('v_bfe_u32 v7, v1, 2, 3\nv_mul_u32_u24 v7, 1312, v7\nv_lshrrev_b32 v8, 5, v1\nv_mul_u32_u24 v9, 640, v8\nv_and_b32 v70, 3, v1\nv_lshlrev_b32 v70, 3, v70')
    a('s_mul_i32 s15, s5, 160\nv_add3_u32 v7, v7, v9, v70\nv_add_u32 v7, s15, v7')
    a('v_mul_u32_u24 v8, 983040, v8\nv_and_b32 v9, 31, v1\nv_lshlrev_b32 v9, 4, v9\nv_add_u32 v8, v8, v9\nv_add_u32 v9, 4096, v8')
    for p in range(3):
        a(f's_mul_i32 s{12+p}, s10, 3\ns_add_u32 s{12+p}, s{12+p}, {p}\ns_and_b32 s15, s{12+p}, 1\ns_lshl_b32 s15, s15, 9\ns_lshr_b32 s{12+p}, s{12+p}, 1\ns_mul_i32 s{12+p}, s{12+p}, 5120\ns_add_u32 s{12+p}, s{12+p}, s15')
        a(f's_mul_i32 s15, s5, 245760\ns_add_u32 s15, s15, {WDF}\ns_add_u32 s{12+p}, s{12+p}, s15')
    for m in range(3):
        for i in range(5):
            g.wait(f'x{m}{i}')
            a(f'ds_write_b128 v6, v[{10+m*20+i*4}:{13+m*20+i*4}] offset:{m*5248+i*256}')
    a('s_waitcnt lgkmcnt(0)\ns_barrier')
    def st(n):
        p,j=divmod(n,5)
        g.v(f'buffer_store_dwordx4 v[{72+n*4}:{75+n*4}], v{9 if j==4 else 8}, s[52:55], s{12+p} offen offset:{(j&3)*1024} sc1')
    for n in range(15):
        p,j=divmod(n,5)
        for e in range(2): a(f'ds_read_b64_tr_b16 v[{72+n*4+2*e}:{73+n*4+2*e}], v7 offset:{(16*p+8*e)*1312+j*32}')
        if n>=3: a('s_waitcnt lgkmcnt(6)'); st(n-3)
    for n in range(12,15): a(f's_waitcnt lgkmcnt({(14-n)*2})'); st(n)
    w0(g,'L_W_i',lambda:a(iload(140)))
    a(f's_lshl_b32 s10, s10, 2\ns_add_u32 s10, s10, {FW}\nv_lshlrev_b32 v3, 7, v1')
    g.stamp(1)
    g.wait0(); a('s_barrier')
    w0(g,'L_W_s',lambda:(spin2(g,'L_W_I',140,iload(140)),a('s_mov_b64 exec, 0xff'),post(g,2,3,'s10')))
    g.dump('L_W_d')
    a('s_endpgm\nL_W_end:')
```
